```python
import torch

def _softmax(x, axis=-1):
    return torch.softmax(x, dim=axis)

def _gelu(x):
    return torch.nn.functional.gelu(x, approximate='tanh')

def _silu(x):
    return torch.nn.functional.silu(x)

def _sigmoid(x):
    return torch.sigmoid(x)

def _layernorm(x, axis=-1, eps=1e-05):
    m = x.mean(dim=axis, keepdim=True)
    v = x.var(dim=axis, keepdim=True, unbiased=False)
    return (x - m) / torch.sqrt(v + eps)

def _scatter_add(tgt, idx, src, axis=0):
    return tgt.clone().index_add_(axis, idx, src)

def _segment_sum(src, seg, n):
    out = torch.zeros((n,) + src.shape[1:], dtype=src.dtype)
    return out.index_add_(0, seg, src)

def _pad(x, pw):
    flat = tuple((v for pair in reversed(pw) for v in pair))
    return torch.nn.functional.pad(x, flat)
kernel_name = 'adaLN_cond__ssm_conv_s4__glu_gated_glu__prompt'

def setup_inputs():

    _w = lambda a: (lambda t: t.to(torch.bfloat16) if t.is_floating_point() else t)(torch.as_tensor(a))

    def _A_setup():
        B, L, D, N = (1, 2048, 512, 128)
        A_re = -(lambda _x: torch.exp(torch.as_tensor(_x)))((lambda *s: torch.randn(*s, dtype=torch.bfloat16) * 3.2)(D, N))
        A_im = torch.pi * (lambda *s: torch.randn(*s, dtype=torch.bfloat16) * 0.1)(D, N)
        B_re = (lambda *s: torch.randn(*s, dtype=torch.bfloat16) * 0.2)(D, N)
        B_im = (lambda *s: torch.randn(*s, dtype=torch.bfloat16) * 0.2)(D, N)
        C_re = (lambda *s: torch.randn(*s, dtype=torch.bfloat16) * 0.2)(D, N)
        C_im = (lambda *s: torch.randn(*s, dtype=torch.bfloat16) * 0.2)(D, N)
        log_dt = (lambda *s: torch.randn(*s, dtype=torch.bfloat16) * 0.1)(D) * 0.5 - 4.0
        Dskip = (lambda *s: torch.randn(*s, dtype=torch.bfloat16) * 0.1)(D)
        return {'u': _w((lambda *s: torch.randn(*s, dtype=torch.bfloat16) * 0.05)(B, L, D)), 'A_re': _w(A_re), 'A_im': _w(A_im), 'B_re': _w(B_re), 'B_im': _w(B_im), 'C_re': _w(C_re), 'C_im': _w(C_im), 'log_dt': _w(log_dt), 'Dskip': _w(Dskip)}
    _A_in = _A_setup()

    def _B_setup():
        B, S, D, F = (1, 2048, 512, 1792)
        return {'x': _w((lambda *s: torch.randn(*s, dtype=torch.bfloat16) * 0.05)(B, S, D)), 'w_gate': _w((lambda *s: torch.randn(*s, dtype=torch.bfloat16) * 0.05)(D, F)), 'w_up': _w((lambda *s: torch.randn(*s, dtype=torch.bfloat16) * 0.05)(D, F)), 'w_down': _w((lambda *s: torch.randn(*s, dtype=torch.bfloat16) * 0.05)(F, D))}
    _B_in = _B_setup()
    return {'A_u': _A_in['u'], 'A_A_re': _A_in['A_re'], 'A_A_im': _A_in['A_im'], 'A_B_re': _A_in['B_re'], 'A_B_im': _A_in['B_im'], 'A_C_re': _A_in['C_re'], 'A_C_im': _A_in['C_im'], 'A_log_dt': _A_in['log_dt'], 'A_Dskip': _A_in['Dskip'], 'B_x': _B_in['x'], 'B_w_gate': _B_in['w_gate'], 'B_w_up': _B_in['w_up'], 'B_w_down': _B_in['w_down'], 'c': _w((lambda *s: torch.randn(*s, dtype=torch.bfloat16) * 0.1)(1, 512) * 8.0), 'w_mod': _w((lambda *s: torch.randn(*s, dtype=torch.bfloat16) * 0.1)(512, 6 * 512) * 512 ** (-0.5) * 8.0)}

def reference(A_u, A_A_re, A_A_im, A_B_re, A_B_im, A_C_re, A_C_im, A_log_dt, A_Dskip, B_x, B_w_gate, B_w_up, B_w_down, c, w_mod):

    def _A_ref(u, A_re, A_im, B_re, B_im, C_re, C_im, log_dt, Dskip):
        Bsz, L, D = u.shape
        dt = torch.exp(log_dt)[:, None]
        A = A_re + 1j * A_im
        Bc = B_re + 1j * B_im
        Cc = C_re + 1j * C_im
        logdA = dt * A
        dB = dt * Bc
        l = (lambda x, dt: x.to(dt))(torch.arange(L), A_re.dtype)
        P = torch.exp(logdA[:, :, None] * l[None, None, :])
        K = torch.einsum('dn,dnl,dn->dl', Cc, P, dB).real
        L2 = 2 * L
        Kp = _pad(K, ((0, 0), (0, L)))
        up = (lambda x, *d: x.permute(*d))(u, 0, 2, 1)
        up = _pad(up, ((0, 0), (0, 0), (0, L)))
        Kf = (lambda x, axes=(-2, -1): torch.fft.rfft2(x.float(), dim=axes))(Kp[:, None, :], axes=(-2, -1))
        Uf = (lambda x, axes=(-2, -1): torch.fft.rfft2(x.float(), dim=axes))(up[:, :, None, :], axes=(-2, -1))
        Yf = Uf * Kf[None, :, :, :]
        y = (lambda x, s, axes=(-2, -1): torch.fft.irfft2(x, s=s, dim=axes).to(torch.bfloat16))(Yf, (1, L2), axes=(-2, -1))[:, :, 0, :L]
        y = (lambda x, *d: x.permute(*d))(y, 0, 2, 1) + u * Dskip[None, None, :]
        return y

    def _B_ref(x, w_gate, w_up, w_down):
        g = torch.einsum('bsd,df->bsf', x, w_gate)
        u = torch.einsum('bsd,df->bsf', x, w_up)
        h = _sigmoid(g) * u
        return torch.einsum('bsf,fd->bsd', h, w_down)
    x = A_u
    mod = (_silu(c) @ w_mod).reshape(c.shape[0], 6, 1, -1)
    sa, ca, ga, sb, cb, gb = (mod[:, 0].clone(), mod[:, 1].clone(), mod[:, 2].clone(), mod[:, 3].clone(), mod[:, 4].clone(), mod[:, 5].clone())
    h = _layernorm(x, axis=-1) * (1 + ca) + sa
    x = x + ga * _A_ref(h, A_A_re, A_A_im, A_B_re, A_B_im, A_C_re, A_C_im, A_log_dt, A_Dskip)
    h = _layernorm(x, axis=-1) * (1 + cb) + sb
    x = x + gb * _B_ref(h, B_w_gate, B_w_up, B_w_down)
    return x
```

```python
import re, os
_here = os.path.dirname(os.path.abspath(__file__))
HEADER = open(os.path.join(_here, '..', 'cdna_kernels', 'adaLN_cond__ssm_conv_s4__glu_gated_glu__prompt.s.ref')).read().split('; Override launch')[0]

def v(i, n=1): return f'v{i}' if n == 1 else f'v[{i}:{i+n-1}]'
def s(i, n=1): return f's{i}' if n == 1 else f's[{i}:{i+n-1}]'
def a(i, n=1): return f'a{i}' if n == 1 else f'a[{i}:{i+n-1}]'

_reg_re = re.compile(r'^(-?)(?:abs\()?\|?([vsa])(?:(\d+)|\[(\d+):(\d+)\])\|?\)?$')
def regs_of(tok):
    tok = tok.strip()
    if tok in ('vcc',): return {('s', 106), ('s', 107)}
    if tok == 'vcc_lo': return {('s', 106)}
    if tok == 'vcc_hi': return {('s', 107)}
    if tok == 'exec': return {('s', 126), ('s', 127)}
    if tok == 'm0': return {('s', 124)}
    m = _reg_re.match(tok)
    if not m: return set()
    k = m.group(2)
    if m.group(3) is not None: return {(k, int(m.group(3)))}
    return {(k, i) for i in range(int(m.group(4)), int(m.group(5)) + 1)}

TRANS = ('v_exp_f32', 'v_log_f32', 'v_rcp_f32', 'v_rsq_f32', 'v_sqrt_f32', 'v_sin_f32', 'v_cos_f32', 'v_rcp_iflag_f32')

class Ins:
    def __init__(self, line):
        self.line = line
        t = line.split(';')[0].strip()
        parts = t.split(None, 1)
        self.mn = parts[0]
        rest = parts[1] if len(parts) > 1 else ''
        ops = []; cur = ''; depth = 0
        for ch in rest:
            if ch == '[': depth += 1
            if ch == ']': depth -= 1
            if ch == ',' and depth == 0: ops.append(cur.strip()); cur = ''
            else: cur += ch
        if cur.strip(): ops.append(cur.strip())
        self.mods = ''
        if ops:
            sp = ops[-1].split(None, 1)
            if len(sp) > 1: ops[-1] = sp[0]; self.mods = sp[1]
        self.ops = ops
        mn = self.mn
        base = re.sub(r'_(e32|e64|sdwa|dpp)$', '', mn)
        self.base = base
        self.is_mfma = mn.startswith('v_mfma')
        self.is_valu = mn.startswith('v_') and not self.is_mfma
        self.is_ds = mn.startswith('ds_')
        self.is_vmem = mn.startswith(('buffer_', 'global_', 'flat_', 'scratch_'))
        self.is_salu = mn.startswith('s_')
        self.is_trans = base in TRANS
        self.is_dpp = mn.endswith('_dpp') or any(k in self.mods for k in ('row_shr', 'row_ror', 'row_shl', 'quad_perm', 'row_mirror', 'row_half_mirror', 'row_bcast', 'row_newbcast', 'wave_'))
        self.is_permlane = base.startswith('v_permlane')
        self.is_lane = base in ('v_readlane_b32', 'v_readfirstlane_b32', 'v_writelane_b32')
        self.opsel_moves = ('sdwa' in mn and 'dst_sel:DWORD' not in self.mods) or (('op_sel' in self.mods) and not base.startswith('v_pk_') and not self.is_mfma)
        W = set(); R = set()
        o = [regs_of(x) for x in ops]
        self.srcA = self.srcB = self.srcC = set()
        self.store_data = set()
        self.lds_dma = False
        if self.is_mfma:
            W = o[0]; self.srcA, self.srcB, self.srcC = o[1], o[2], o[3]; R = o[1] | o[2] | o[3]
            self.passes = 8 if '32x32' in mn else 4
            if '_f32_32x32x2_f32' in mn or '16x16x4_f32' in mn: raise Exception('sgemm hazards not modelled')
        elif self.is_valu:
            if self.is_permlane and 'swap' in base:
                W = o[0] | o[1]; R = o[0] | o[1]
            elif base.startswith('v_cmp'):
                W = o[0]; R = set().union(*o[1:])
                if base.startswith('v_cmpx'): W = W | regs_of('exec')
            elif base in ('v_add_co_u32', 'v_sub_co_u32', 'v_addc_co_u32', 'v_subb_co_u32', 'v_mad_u64_u32', 'v_div_scale_f32'):
                W = o[0] | o[1]; R = set().union(*o[2:])
            else:
                W = o[0]; R = set().union(*o[1:]) if len(o) > 1 else set()
                if base in ('v_fmac_f32', 'v_dot2c_f32_bf16', 'v_writelane_b32', 'v_pk_fmac_f16') or self.is_dpp or 'sdwa' in mn: R = R | o[0]
                if base == 'v_cndmask_b32' and len(ops) == 3: R = R | regs_of('vcc')
        elif self.is_ds:
            if base.startswith(('ds_read', 'ds_bpermute', 'ds_permute', 'ds_swizzle')):
                W = o[0]; R = set().union(*o[1:])
                if 'd16' in base: R = R | o[0]
            else:
                R = set().union(*o)
        elif self.is_vmem:
            lds = re.search(r'\blds\b', self.mods) is not None or '_load_lds_' in base
            self.lds_dma = lds
            if 'load' in base and not lds:
                W = o[0]; R = set().union(*o[1:])
                if 'd16' in base: R = R | o[0]
            elif lds:
                R = set().union(*o) | regs_of('m0')
            else:
                R = set().union(*o)
                if 'atomic' in base and 'sc0' in self.mods: W = o[0] if base.startswith('buffer') else o[0]
                if base.startswith('buffer_store'): self.store_data = o[0]
                elif base.startswith('global_store'): self.store_data = o[1]
                if not (base.endswith('x3') or base.endswith('x4')): self.store_data = set()
        elif self.is_salu:
            if base.startswith(('s_cmp', 's_cbranch', 's_branch', 's_waitcnt', 's_nop', 's_barrier', 's_endpgm', 's_setprio', 's_sleep', 's_bitcmp')):
                R = set().union(*o) if o else set()
            else:
                W = o[0] if o else set(); R = set().union(*o[1:]) if len(o) > 1 else set()
                if 'saveexec' in base: W = W | regs_of('exec')
        self.W = W; self.R = R
        self.states = 1
        if base == 's_nop': self.states = int(ops[0], 0) + 1

def need(p, c):
    n = 0
    vW = {r for r in p.W if r[0] != 's'}
    sW = {r for r in p.W if r[0] == 's'}
    if p.is_valu:
        if c.is_mfma and (vW & c.R): n = max(n, 2)
        if c.is_valu:
            if p.is_trans and not c.is_trans and (vW & c.R): n = max(n, 1)
            if p.is_trans and c.is_trans and (vW & c.R): n = max(n, 1)
            if c.is_dpp and (vW & c.R): n = max(n, 2)
            if c.is_permlane and (vW & c.R): n = max(n, 2)
            if c.is_lane and (vW & c.R): n = max(n, 1)
            if p.opsel_moves and (vW & (c.R | c.W)): n = max(n, 1)
            if sW & c.R: n = max(n, 4 if c.is_lane else 2)
            if (sW & regs_of('exec')):
                n = max(n, 5 if c.is_dpp else 4 if (c.is_lane or c.is_permlane) else 0)
        if c.is_mfma and (sW & regs_of('exec')): n = max(n, 4)
        if c.is_vmem and (sW & c.R): n = max(n, 5)
        if c.is_salu and (sW & c.R): n = max(n, 2)
        if p.is_trans and (c.is_vmem or c.is_ds) and (vW & c.R): n = max(n, 1)
        if p.base.startswith('v_dot2') and (vW & (c.R | c.W)):
            same = c.base == p.base and not (vW & set().union(*[regs_of(x) for x in c.ops[1:3]]))
            if not same: n = max(n, 3)
    if p.is_mfma:
        big = 12 if p.passes == 8 else 8
        if c.is_mfma:
            if p.W & (c.srcA | c.srcB): n = max(n, big)
            if p.W & c.srcC and not (p.W == c.srcC and p.passes == c.passes): n = max(n, 10 if p.passes == 8 else 6)
            if p.W & c.W and not (p.W & c.srcC): n = max(n, big)
        else:
            if p.W & (c.R | c.W): n = max(n, big)
            if c.is_valu and (p.srcC & c.W): n = max(n, 7 if p.passes == 8 else 3)
    if p.is_salu and (p.W & regs_of('m0')) and c.lds_dma: n = max(n, 1)
    if p.store_data and (p.store_data & c.W): n = max(n, 2)
    return n

def hazard_pass(lines):
    out = []
    hist = []
    for l in lines:
        t = l.strip()
        if not t or t.startswith(';') or t.startswith('.') or t.endswith(':'):
            out.append(l)
            continue
        c = Ins(t)
        req = 0
        dist = 0
        for p in reversed(hist):
            r = need(p, c) - dist
            if r > req: req = r
            dist += p.states
            if dist >= 12: break
        if req > 0:
            nop = Ins(f's_nop {req-1}')
            out.append(f'    s_nop {req-1}')
            hist.append(nop)
        out.append(l)
        hist.append(c)
        if len(hist) > 24: hist = hist[-24:]
        if c.base in ('s_branch', 's_endpgm'): hist = []
    return out

class Kernel:
    def __init__(self, name, grid, block, lds=0, vgpr=256, sgpr=102, accum=None):
        self.name = name; self.grid = grid; self.block = block; self.lds = lds
        self.vgpr = vgpr; self.sgpr = sgpr; self.accum = accum
        self.lines = []
        self.nlab = 0
    def __call__(self, s=''):
        for l in s.split('\n'):
            l = l.strip()
            if not l: continue
            if l.endswith(':') or l.startswith('.'):
                self.lines.append(l)
            else:
                self.lines.append('    ' + l)
    def label(self, base='L'):
        self.nlab += 1
        return f'L_{self.name}_{base}{self.nlab}'
    def srd(self, d, base, nbytes, off=0):
        if off:
            self(f's_add_u32 s{d}, s{base}, {off}\ns_addc_u32 s{d+1}, s{base+1}, 0')
        else:
            self(f's_mov_b32 s{d}, s{base}\ns_mov_b32 s{d+1}, s{base+1}')
        self(f's_mov_b32 s{d+2}, {nbytes}\ns_mov_b32 s{d+3}, 0x20000')
    diag = False
    def stamp(self, i):
        if self.diag: self(f's_waitcnt lgkmcnt(0)\ns_memtime s[{70+2*i}:{71+2*i}]\ns_waitcnt lgkmcnt(0)')
    def dump_stamps(self, n, area, wave_sgpr=3, wpb=8):
        if not self.diag: return
        self('s_waitcnt vmcnt(0)')
        self.stamp(n - 1)
        self(f's_load_dwordx2 s[64:65], s[0:1], 136\ns_mov_b64 exec, 1\ns_mul_i32 s68, s2, {wpb}\ns_add_u32 s68, s68, s{wave_sgpr}\ns_lshl_b32 s68, s68, 6\ns_waitcnt lgkmcnt(0)')
        self(f's_add_u32 s64, s64, {area}\ns_addc_u32 s65, s65, 0\ns_mov_b32 s66, 0x1000000\ns_mov_b32 s67, 0x20000\nv_mov_b32 v1, 0')
        for i in range(n):
            if i: self(f's_sub_u32 s{70+2*i}, s{70+2*i}, s70')
            self(f'v_mov_b32 v0, s{70+2*i}\nbuffer_store_dword v0, v1, s[64:67], s68 offen offset:{4*i}')
    def text(self):
        o = [f'.globl {self.name}', '.p2align 8', f'.type {self.name},@function', f'{self.name}:']
        o += hazard_pass(self.lines)
        return '\n'.join(o)
    def desc(self):
        acc = self.accum if self.accum is not None else min(256, (self.vgpr + 3) // 4 * 4)
        return f'''.p2align 6
.amdhsa_kernel {self.name}
  .amdhsa_next_free_vgpr {self.vgpr}
  .amdhsa_next_free_sgpr {self.sgpr}
  .amdhsa_accum_offset {acc}
  .amdhsa_group_segment_fixed_size 0
  .amdhsa_kernarg_size 144
  .amdhsa_user_sgpr_count 2
  .amdhsa_user_sgpr_kernarg_segment_ptr 1
  .amdhsa_system_sgpr_workgroup_id_x 1
  .amdhsa_float_denorm_mode_32 3
  .amdhsa_float_denorm_mode_16_64 3
.end_amdhsa_kernel'''

def emit(kernels, order=None, path=None):
    order = order or kernels
    o = [HEADER.rstrip('\n')]
    for k in order:
        o.append(f'; @launch kernel={k.name} grid=({k.grid},1,1) block=({k.block},1,1) lds={k.lds}')
    o.append('.amdgcn_target "amdgcn-amd-amdhsa--gfx950"')
    o.append('.text')
    for k in kernels:
        o.append(k.text())
    o.append('.section .rodata,"a"')
    for k in kernels:
        o.append(k.desc())
    s_ = '\n'.join(o) + '\n'
    if path: open(path, 'w').write(s_)
    return s_
```

```python
from asmgen import *
from layout import *

N_MOD, N_LN, N_KG = 96, 64, 512
UVS = 544
KT = 64 * UVS
K1_LDS = KT + 6272

def cmul(k, zr, zi, xr, xi, yr, yi, t):
    k(f'''v_mul_f32 v{t}, v{xi}, v{yi}
    v_mul_f32 v{t+1}, v{xi}, v{yr}
    v_fma_f32 v{zr}, v{xr}, v{yr}, -v{t}
    v_fma_f32 v{zi}, v{xr}, v{yi}, v{t+1}''')

def build_k1():
    k = Kernel('k1_kernel', N_MOD + N_LN + N_KG, 256, K1_LDS, vgpr=128, sgpr=64)
    k(f'''
    s_cmp_ge_u32 s2, {N_MOD + N_LN + N_KG}
    s_cbranch_scc1 L_k1_end
    s_load_dwordx2 s[4:5], s[0:1], {KA['ws']}
    v_lshrrev_b32 v1, 6, v0
    v_and_b32 v2, 63, v0
    v_readfirstlane_b32 s3, v1
    s_cmp_ge_u32 s2, {N_MOD + N_LN}
    s_cbranch_scc1 L_k1_kgen
    s_cmp_ge_u32 s2, {N_MOD}
    s_cbranch_scc1 L_k1_ln
    ''')
    D = 16
    C = 48
    A = 56
    k(f'''
    s_load_dwordx2 s[6:7], s[0:1], {KA['wmod']}
    s_load_dwordx2 s[16:17], s[0:1], {KA['c']}
    v_lshrrev_b32 v3, 2, v2
    s_lshl_b32 s18, s3, 7
    v_add_u32 v3, s18, v3
    v_and_b32 v4, 3, v2
    v_mul_u32_u24 v5, 6144, v3
    v_lshl_add_u32 v5, v4, 4, v5
    v_lshlrev_b32 v6, 1, v3
    s_lshl_b32 s19, s2, 6
    ''')
    for i in range(8): k(f'v_mov_b32 v{C+i}, 0\nv_mov_b32 v{A+i}, 0')
    k('s_waitcnt lgkmcnt(0)')
    k.srd(8, 6, 512 * 6144)
    for i in range(8):
        k(f'global_load_short_d16_hi v{C+i}, v6, s[16:17] offset:{32*i}')
    for i in range(8):
        k(f'buffer_load_dwordx4 {v(D+4*i,4)}, v5, s[8:11], s19 offen\ns_add_u32 s19, s19, {16*6144}')
    k.srd(12, 4, 3072 * 4, MODF)
    k.srd(20, 4, 3072 * 2, MODH)
    k(f's_mov_b32 s24, 0xbfb8aa3b\ns_mov_b32 s25, 0xffff0000\nv_mov_b32 v15, s25')
    k('s_waitcnt vmcnt(8)')
    for i in range(8): k(f'v_mul_f32 v{64+i}, s24, v{C+i}')
    for i in range(8): k(f'v_exp_f32 v{64+i}, v{64+i}')
    for i in range(8): k(f'v_add_f32 v{64+i}, 1.0, v{64+i}')
    for i in range(8): k(f'v_rcp_f32 v{64+i}, v{64+i}')
    for i in range(8): k(f'v_mul_f32 v{64+i}, v{64+i}, v{C+i}')
    for i in range(0, 8, 2):
        k(f'v_cvt_pk_bf16_f32 v72, v{64+i}, v{65+i}\nv_lshlrev_b32 v{C+i}, 16, v72\nv_and_b32 v{C+i+1}, v15, v72')
    for i in range(8):
        k(f's_waitcnt vmcnt({7-i})')
        for j in range(4):
            k(f'''v_lshlrev_b32 v{64+2*j}, 16, v{D+4*i+j}
            v_and_b32 v{65+2*j}, v15, v{D+4*i+j}''')
        for j in range(8):
            k(f'v_fmac_f32 v{A+j}, v{64+j}, v{C+i}')
    for j in range(4): k(f'v_permlane32_swap_b32 v{A+j}, v{A+j+4}')
    for j in range(4): k(f'v_add_f32 v{A+j}, v{A+j}, v{A+j+4}')
    for j in range(2): k(f'v_permlane16_swap_b32 v{A+j}, v{A+j+2}')
    for j in range(2): k(f'v_add_f32 v{A+j}, v{A+j}, v{A+j+2}')
    for ror in (8, 4):
        for j in range(2): k(f'v_add_f32_dpp v{A+j}, v{A+j}, v{A+j} row_ror:{ror} row_mask:0xf bank_mask:0xf')
    k(f'''
    v_lshrrev_b32 v7, 4, v2
    v_lshlrev_b32 v7, 3, v7
    v_lshl_add_u32 v7, v4, 5, v7
    s_lshl_b32 s18, s3, 7
    v_add_u32 v7, s18, v7
    ds_write_b64 v7, v[{A}:{A+1}]
    s_waitcnt lgkmcnt(0)
    s_barrier
    s_cmp_lg_u32 s3, 0
    s_cbranch_scc1 L_k1_end
    s_mov_b64 exec, 0xffffffff
    v_lshlrev_b32 v7, 2, v2
    ds_read_b32 v8, v7
    ds_read_b32 v9, v7 offset:128
    ds_read_b32 v10, v7 offset:256
    ds_read_b32 v11, v7 offset:384
    s_lshr_b32 s18, s2, 4
    s_cmp_eq_u32 s18, 1
    s_cselect_b32 s19, 1.0, 0
    s_cmp_eq_u32 s18, 4
    s_cselect_b32 s19, 1.0, s19
    s_lshl_b32 s26, s2, 7
    s_lshl_b32 s27, s2, 6
    v_lshlrev_b32 v12, 1, v2
    s_waitcnt lgkmcnt(0)
    v_add_f32 v8, v8, v9
    v_add_f32 v10, v10, v11
    v_add_f32 v8, v8, v10
    v_cvt_pk_bf16_f32 v8, v8, v8
    v_and_b32 v8, v15, v8
    v_add_f32 v8, s19, v8
    v_cvt_pk_bf16_f32 v9, v8, v8
    v_and_b32 v8, v15, v9
    buffer_store_dword v8, v7, s[12:15], s26 offen
    buffer_store_short v9, v12, s[20:23], s27 offen
    s_endpgm
    ''')
    R = 16
    T = 48
    S = 80; Q = 88
    k(f'''L_k1_ln:
    s_load_dwordx2 s[6:7], s[0:1], {KA['u']}
    s_sub_u32 s16, s2, {N_MOD}
    s_and_b32 s17, s16, 7
    s_lshr_b32 s16, s16, 3
    s_lshl_b32 s17, s17, 3
    s_add_u32 s16, s16, s17
    s_lshl_b32 s16, s16, 2
    s_add_u32 s16, s16, s3
    s_lshl_b32 s17, s16, 13
    v_lshlrev_b32 v3, 4, v2
    s_waitcnt lgkmcnt(0)
    ''')
    k.srd(8, 6, 2048 * 1024)
    for i in range(8):
        k(f'buffer_load_dwordx4 {v(R+4*i,4)}, v3, s[8:11], s17 offen\ns_add_u32 s17, s17, 1024')
    k.srd(12, 4, 512 * 4096, XT)
    k.srd(20, 4, 2048 * 8, STATS)
    k(f'''s_mov_b32 s24, 0x05040100
    s_mov_b32 s25, 0x07060302
    v_mov_b32 v14, 0x3f803f80
    v_mov_b32 v15, 0xffff0000
    v_lshlrev_b32 v4, 15, v2
    s_lshl_b32 s17, s16, 4
    v_lshrrev_b32 v5, 4, v2
    v_lshlrev_b32 v5, 4, v5
    s_lshl_b32 s18, s16, 6
    ''')
    for i in range(8):
        k(f's_waitcnt vmcnt({7-i})')
        k(f'v_dot2_f32_bf16 v{S+i}, v{R+4*i}, v14, 0\nv_dot2_f32_bf16 v{Q+i}, v{R+4*i}, v{R+4*i}, 0')
        for j in range(1, 4):
            k(f'v_dot2_f32_bf16 v{S+i}, v{R+4*i+j}, v14, v{S+i}\nv_dot2_f32_bf16 v{Q+i}, v{R+4*i+j}, v{R+4*i+j}, v{Q+i}')
    for j in range(8):
        sel = 's24' if j % 2 == 0 else 's25'
        for p in range(4):
            k(f'v_perm_b32 v{T+4*j+p}, v{R+4*(2*p+1)+j//2}, v{R+4*(2*p)+j//2}, {sel}')
        k(f'buffer_store_dwordx4 {v(T+4*j,4)}, v4, s[12:15], s17 offen\ns_add_u32 s17, s17, 4096')
    for X in (S, Q):
        for j in range(4): k(f'v_permlane32_swap_b32 v{X+j}, v{X+j+4}')
    for X in (S, Q):
        for j in range(4): k(f'v_add_f32 v{X+j}, v{X+j}, v{X+j+4}')
    for X in (S, Q):
        for j in range(2): k(f'v_permlane16_swap_b32 v{X+j}, v{X+j+2}')
    for X in (S, Q):
        for j in range(2): k(f'v_add_f32 v{X+j}, v{X+j}, v{X+j+2}')
    for ror in (8, 4, 2, 1):
        for X in (S, Q):
            for j in range(2): k(f'v_add_f32_dpp v{X+j}, v{X+j}, v{X+j} row_ror:{ror} row_mask:0xf bank_mask:0xf')
    k(f'''
    v_mul_f32 v6, 0x3b000000, v{S}
    v_mul_f32 v7, 0x3b000000, v{S+1}
    v_mul_f32 v8, 0x3b000000, v{Q}
    v_mul_f32 v9, 0x3b000000, v{Q+1}
    v_fma_f32 v8, -v6, v6, v8
    v_fma_f32 v9, -v7, v7, v9
    v_max_f32 v8, 0, v8
    v_max_f32 v9, 0, v9
    v_cvt_pk_bf16_f32 v10, v6, v7
    v_cvt_pk_bf16_f32 v11, v8, v9
    v_lshlrev_b32 v96, 16, v10
    v_and_b32 v98, v15, v10
    v_lshlrev_b32 v8, 16, v11
    v_and_b32 v9, v15, v11
    v_add_f32 v8, 0x3727c5ac, v8
    v_add_f32 v9, 0x3727c5ac, v9
    v_cvt_pk_bf16_f32 v11, v8, v9
    v_lshlrev_b32 v8, 16, v11
    v_and_b32 v9, v15, v11
    v_sqrt_f32 v8, v8
    v_sqrt_f32 v9, v9
    v_cvt_pk_bf16_f32 v11, v8, v9
    v_lshlrev_b32 v8, 16, v11
    v_and_b32 v9, v15, v11
    v_rcp_f32 v97, v8
    v_rcp_f32 v99, v9
    s_mov_b32 exec_lo, 0x00010001
    s_mov_b32 exec_hi, 0x00010001
    buffer_store_dwordx4 v[96:99], v5, s[20:23], s18 offen
    s_endpgm
    ''')
    P = 16
    GA = 24
    SA = 32
    k(f'''L_k1_kgen:
    s_load_dwordx4 s[8:11], s[0:1], {KA['Are']}
    s_load_dwordx4 s[12:15], s[0:1], {KA['Bre']}
    s_load_dwordx4 s[16:19], s[0:1], {KA['Cre']}
    s_load_dwordx2 s[20:21], s[0:1], {KA['ldt']}
    s_sub_u32 s22, s2, {N_MOD + N_LN}
    v_and_b32 v3, 127, v0
    s_lshl_b32 s23, s22, 8
    v_lshl_add_u32 v4, v3, 1, s23
    s_lshl_b32 s23, s22, 1
    v_mov_b32 v5, s23
    ''')
    for i in range(7): k(f'v_mov_b32 v{P+i}, 0')
    k('s_waitcnt lgkmcnt(0)')
    for i in range(6):
        k(f'global_load_short_d16_hi v{P+i}, v4, s[{8+2*i}:{9+2*i}]')
    k(f'global_load_short_d16_hi v{P+6}, v5, s[20:21]')
    k.srd(24, 4, 512 * 4096, KREV)
    k(f'''v_mov_b32 v15, 0xffff0000
    v_lshlrev_b32 v6, 3, v0
    v_sub_u32 v6, 2047, v6''')
    for e in range(8):
        k(f'v_subrev_u32 v{GA+e}, {e}, v6\nv_cvt_f32_u32 v{GA+e}, v{GA+e}')
    for e in range(0, 8, 2):
        k(f'''v_cvt_pk_bf16_f32 v7, v{GA+e}, v{GA+e+1}
        v_lshlrev_b32 v{GA+e}, 16, v7
        v_and_b32 v{GA+e+1}, v15, v7''')
    for e in range(8):
        k(f'v_cvt_u32_f32 v{GA+e}, v{GA+e}\nv_lshlrev_b32 v{GA+e}, 1, v{GA+e}')
    k(f'''v_lshrrev_b32 v8, 4, v2
    v_and_b32 v9, 15, v2
    v_lshlrev_b32 v10, 4, v8
    v_mad_u32_u24 v11, v9, {UVS // 16}, v8
    v_lshlrev_b32 v11, 4, v11
    v_lshlrev_b32 v9, 3, v9
    s_cmp_eq_u32 s3, 1
    s_cbranch_scc1 L_k1_sa1
    s_cmp_eq_u32 s3, 2
    s_cbranch_scc1 L_k1_sa2
    v_and_b32 v12, 1, v8
    v_lshrrev_b32 v13, 1, v8
    v_lshlrev_b32 v12, 2, v12
    v_lshl_add_u32 v12, v13, 7, v12
    v_add_u32 v12, v12, v9''')
    for r in range(4): k(f'v_add_u32 v{SA+r}, {r}, v12')
    k(f'''s_branch L_k1_sa_done
    L_k1_sa1:
    v_cmp_gt_u32 vcc, 2, v8
    v_lshlrev_b32 v12, 7, v8
    v_add_u32 v12, 256, v12
    v_lshlrev_b32 v13, 8, v8
    v_cndmask_b32 v12, v13, v12, vcc
    v_add_u32 v12, v12, v9''')
    for r in range(4):
        k(f'v_mov_b32 v13, {4*(r&1) + 128*(r>>1)}\nv_mov_b32 v14, {2*r}\nv_cndmask_b32 v13, v13, v14, vcc\nv_add_u32 v{SA+r}, v12, v13')
    k(f'''s_branch L_k1_sa_done
    L_k1_sa2:
    v_lshlrev_b32 v12, 9, v8
    v_add_u32 v12, 1024, v12
    v_add_u32 v12, v12, v9''')
    for r in range(4): k(f'v_add_u32 v{SA+r}, {128*r}, v12')
    k('L_k1_sa_done:')
    for r in range(4): k(f'v_lshlrev_b32 v{SA+r}, 1, v{SA+r}')
    k(f'''v_lshlrev_b32 v3, 2, v3
    s_mov_b32 s28, {LOG2E}
    s_mov_b32 s29, {INV2PI}
    s_waitcnt vmcnt(0)
    v_mul_f32 v{P+6}, s28, v{P+6}
    v_exp_f32 v{P+6}, v{P+6}
    v_cvt_pk_bf16_f32 v{P+6}, v{P+6}, v{P+6}
    v_and_b32 v{P+6}, v15, v{P+6}
    v_mul_f32 v{P}, v{P}, v{P+6}
    v_mul_f32 v{P+1}, v{P+1}, v{P+6}
    v_mul_f32 v{P+2}, v{P+2}, v{P+6}
    v_mul_f32 v{P+3}, v{P+3}, v{P+6}
    v_mul_f32 v{P}, s28, v{P}
    v_mul_f32 v{P+1}, s29, v{P+1}''')
    CB = 36; TMP = 38
    cmul(k, CB, CB+1, P+4, P+5, P+2, P+3, TMP)
    def direct(dst, l):
        lf = {1: '1.0', 4: '4.0', 8: '0x41000000', 128: '0x43000000', 512: '0x44000000'}[l]
        k(f'''v_mul_f32 v{TMP}, {lf}, v{P}
        v_mul_f32 v{TMP+1}, {lf}, v{P+1}
        v_exp_f32 v{TMP}, v{TMP}
        v_fract_f32 v{TMP+1}, v{TMP+1}
        v_cos_f32 v{dst}, v{TMP+1}
        v_sin_f32 v{dst+1}, v{TMP+1}
        v_mul_f32 v{dst}, v{dst}, v{TMP}
        v_mul_f32 v{dst+1}, v{dst+1}, v{TMP}''')
    cnt = [0]
    def put(row, zr, neg=False):
        t = 44 + (cnt[0] % 4); cnt[0] += 1
        k(f'v_cvt_pk_bf16_f32 v{t}, v{zr}, {"-" if neg else ""}v{zr+1}\nds_write_b32 v3, v{t} offset:{row*UVS}')
    k(f's_cmp_ge_u32 s3, 2\ns_cbranch_scc1 L_k1_halfB')
    E = 48
    E128 = 64; Tk = 66; Z = 74
    def e(r): return E + 2*r
    direct(e(1), 1); direct(E128, 128)
    cmul(k, e(2), e(2)+1, e(1), e(1)+1, e(1), e(1)+1, TMP)
    cmul(k, Tk+2, Tk+3, CB, CB+1, E128, E128+1, TMP+2)
    cmul(k, e(3), e(3)+1, e(2), e(2)+1, e(1), e(1)+1, TMP)
    cmul(k, e(4), e(4)+1, e(2), e(2)+1, e(2), e(2)+1, TMP+2)
    cmul(k, Tk+4, Tk+5, Tk+2, Tk+3, E128, E128+1, TMP)
    cmul(k, e(5), e(5)+1, e(4), e(4)+1, e(1), e(1)+1, TMP+2)
    cmul(k, e(6), e(6)+1, e(4), e(4)+1, e(2), e(2)+1, TMP)
    cmul(k, e(7), e(7)+1, e(4), e(4)+1, e(3), e(3)+1, TMP+2)
    cmul(k, Tk+6, Tk+7, Tk+4, Tk+5, E128, E128+1, TMP)
    tk = [CB, Tk+2, Tk+4, Tk+6]
    rows = [(0, r) for r in range(8)] + [(1, r) for r in range(8)] + [(2, r) for r in (0,2,4,6)] + [(3, r) for r in (0,2,4,6)]
    for i, (kap, rho) in enumerate(rows):
        if rho == 0: put(i, tk[kap])
        else:
            z = Z + 2*(i % 2)
            cmul(k, z, z+1, tk[kap], tk[kap]+1, e(rho), e(rho)+1, TMP + 2*(i % 2))
            put(i, z)
    k('s_branch L_k1_uv_done\nL_k1_halfB:')
    E4 = 48; E8 = 50; E512 = 52; VA = 54; TA = 58
    direct(E8, 8); direct(E128, 128); direct(E512, 512); direct(E4, 4)
    k(f'v_mov_b32 v{VA}, 1.0\nv_mov_b32 v{VA+1}, 0')
    put(48, VA, True); put(49, E8, True)
    cmul(k, TA, TA+1, CB, CB+1, E512, E512+1, TMP)
    vprev = E8; tprev = TA
    for i in range(14):
        vn = VA + 2*(i % 2)
        cmul(k, vn, vn+1, vprev, vprev+1, E8, E8+1, TMP)
        put(50+i, vn, True); vprev = vn
        kap = 4 + i
        if kap <= 16:
            if kap < 8:
                put(24 + 2*(kap-4), tprev)
                cmul(k, Z, Z+1, tprev, tprev+1, E4, E4+1, TMP+2)
                put(25 + 2*(kap-4), Z)
            else:
                put(32 + kap - 8, tprev)
            if kap < 16:
                tn = TA + 2*((i+1) % 2)
                cmul(k, tn, tn+1, tprev, tprev+1, E128, E128+1, TMP+2)
                tprev = tn
    F = 48
    k(f'''L_k1_uv_done:
    s_waitcnt lgkmcnt(0)
    s_barrier
    s_cmp_eq_u32 s3, 3
    s_cbranch_scc1 L_k1_mm_done
    s_mul_i32 s30, s3, {16*UVS}
    v_add_u32 v12, s30, v11''')
    for st in range(8):
        k(f'ds_read_b128 {v(F+8*st,4)}, v12 offset:{64*st}\nds_read_b128 {v(F+8*st+4,4)}, v11 offset:{48*UVS + 64*st}')
    for st in range(8):
        k(f's_waitcnt lgkmcnt({min(15, 14-2*st)})')
        k(f'v_mfma_f32_16x16x32_bf16 v[40:43], {v(F+8*st,4)}, {v(F+8*st+4,4)}, {"0" if st == 0 else "v[40:43]"}')
    k(f'''v_cvt_pk_bf16_f32 v44, v40, v41
    v_cvt_pk_bf16_f32 v45, v42, v43
    ds_write_b16 v{SA}, v44 offset:{KT}
    ds_write_b16_d16_hi v{SA+1}, v44 offset:{KT}
    ds_write_b16 v{SA+2}, v45 offset:{KT}
    ds_write_b16_d16_hi v{SA+3}, v45 offset:{KT}
    L_k1_mm_done:
    s_waitcnt lgkmcnt(0)
    s_barrier''')
    for e_ in range(0, 8, 2):
        k(f'v_mov_b32 v{57+e_}, 0')
    for e_ in range(0, 8, 2):
        k(f'ds_read_u16 v{56+e_}, v{GA+e_} offset:{KT}\nds_read_u16_d16_hi v{57+e_}, v{GA+e_+1} offset:{KT}')
    k(f'''v_lshlrev_b32 v6, 4, v0
    s_lshl_b32 s23, s22, 12
    s_waitcnt lgkmcnt(0)''')
    for e_ in range(0, 8, 2):
        k(f'v_or_b32 v{48+e_//2}, v{56+e_}, v{57+e_}')
    k(f'''buffer_store_dwordx4 v[48:51], v6, s[24:27], s23 offen
    L_k1_end:
    s_endpgm''')
    return k

if __name__ == '__main__':
    k1 = build_k1()
    emit([k1], [k1], 'test_k1.s')
```

```python
from asmgen import *
from layout import *
from sched import mfma_stream

N_CONV, N_PGU, N_PWD = 256, 56, 28
KCS = 4160; KCH = 4 * KCS
HB = 2 * KCH; HCH = 4608
EX = 45056
K2_LDS = 65536
MIMIC_X1 = True

def gb_of(sp, i):
    if sp < 32: return 7 * sp + i
    vv, ii = divmod(sp - 32, 3)
    return 7 * (4 * vv + i) + 4 + ii

def build_k2(diag=False):
    k = Kernel('k2_kernel', N_CONV + N_PGU + N_PWD, 512, K2_LDS, vgpr=128, sgpr=96 if diag else 64)
    k.diag = diag
    k.stamp(0)
    k(f'''
    s_cmp_ge_u32 s2, {N_CONV + N_PGU + N_PWD}
    s_cbranch_scc1 L_k2_end
    s_load_dwordx2 s[4:5], s[0:1], {KA['ws']}
    v_lshrrev_b32 v1, 6, v0
    v_and_b32 v2, 63, v0
    v_readfirstlane_b32 s3, v1
    s_cmp_ge_u32 s2, {N_CONV + N_PGU}
    s_cbranch_scc1 L_k2_pwd
    s_cmp_ge_u32 s2, {N_CONV}
    s_cbranch_scc1 L_k2_pgu
    ''')
    X = 16; ST = 20; D0 = 36; D1 = 40; D2 = 44; XE = 48
    k(f'''
    s_load_dwordx2 s[6:7], s[0:1], {KA['dskip']}
    s_lshr_b32 s16, s3, 2
    s_lshl_b32 s17, s2, 1
    s_add_u32 s17, s17, s16
    v_and_b32 v3, 255, v0
    v_lshlrev_b32 v4, 4, v3
    v_lshlrev_b32 v5, 6, v3
    s_lshl_b32 s18, s17, 12
    s_lshl_b32 s19, s17, 2
    s_lshl_b32 s28, s2, 2
    s_and_b32 s29, s3, 3
    s_lshl_b32 s29, s29, 2
    s_lshr_b32 s30, 0x3517, s29
    s_and_b32 s30, s30, 15
    v_and_b32 v6, 15, v2
    v_lshrrev_b32 v7, 4, v2
    v_add_u32 v8, 1, v7
    v_and_b32 v8, 3, v8
    v_lshlrev_b32 v8, 3, v8
    v_lshl_add_u32 v8, v6, 5, v8
    s_lshl_b32 s31, s30, 9
    s_sub_u32 s31, s31, 512
    v_add_u32 v8, s31, v8
    s_waitcnt lgkmcnt(0)
    s_add_u32 s20, s4, s18
    s_addc_u32 s21, s5, 0
    ''')
    k.srd(8, 20, 4096, XT)
    k.srd(12, 20, 4096, KREV)
    k.srd(24, 4, 2048 * 8, STATS)
    k(f'''
    buffer_load_dwordx4 {v(X,4)}, v4, s[8:11], 0 offen
    buffer_load_dwordx4 {v(ST,4)}, v5, s[24:27], 0 offen
    buffer_load_dwordx4 {v(ST+4,4)}, v5, s[24:27], 0 offen offset:16
    buffer_load_dwordx4 {v(ST+8,4)}, v5, s[24:27], 0 offen offset:32
    buffer_load_dwordx4 {v(ST+12,4)}, v5, s[24:27], 0 offen offset:48
    buffer_load_dwordx4 {v(D0,4)}, v4, s[12:15], 0 offen
    buffer_load_dwordx4 {v(D1,4)}, v4, s[12:15], 0 offen offset:4
    buffer_load_dwordx4 {v(D2,4)}, v4, s[12:15], 0 offen offset:8
    buffer_load_dwordx2 {v(XE,2)}, v8, s[8:11], 0 offen offset:512
    buffer_load_dwordx2 {v(XE+2,2)}, v8, s[8:11], 0 offen
    s_add_u32 s22, s4, s19
    s_addc_u32 s23, s5, 0
    s_add_u32 s22, s22, {MODF}
    s_addc_u32 s23, s23, 0
    s_load_dword s32, s[22:23], 0
    s_load_dword s33, s[22:23], 2048
    s_load_dword s34, s[22:23], 4096
    s_load_dword s35, s[6:7], s28
    ''')
    k.srd(36, 20, 4096, X1T)
    k(f'''
    s_mul_i32 s40, s16, {KCH}
    s_mul_i32 s41, s16, {HCH}
    s_add_u32 s41, s41, {HB}
    s_and_b32 s42, s3, 1
    s_lshl_b32 s42, s42, 8
    s_and_b32 s43, s3, 3
    s_mul_i32 s43, s43, {KCS}
    s_add_u32 s43, s43, s40
    s_add_u32 s43, s43, 4096
    v_and_b32 v9, 1, v2
    v_lshl_add_u32 v9, v9, 4, s43
    v_lshl_add_u32 v10, v2, 4, s41
    v_cmp_gt_u32 vcc, 32, v2
    v_mov_b32 v12, 0
    v_mov_b32 v13, 0
    v_mov_b32 v14, 0
    v_mov_b32 v15, 0
    v_cndmask_b32 v9, v9, v10, vcc
    ds_write_b128 v9, v[12:15]
    v_add_u32 v9, s40, v4
    s_add_u32 s44, s41, 512
    v_add_u32 v10, s44, v4
    v_add_u32 v11, 4, v6
    v_and_b32 v11, 15, v11
    v_sub_u32 v11, 2031, v11
    v_lshl_add_u32 v11, v7, 3, v11
    v_and_b32 v12, 3, v11
    v_lshrrev_b32 v11, 2, v11
    v_lshlrev_b32 v11, 3, v11
    v_mul_u32_u24 v12, {KCS}, v12
    v_add_u32 v11, v11, v12
    s_sub_u32 s45, s40, s42
    s_sub_u32 s45, s45, 3776
    v_add_u32 v11, s45, v11
    v_lshlrev_b32 v12, 4, v7
    v_lshl_add_u32 v12, v6, 5, v12
    s_sub_u32 s45, s41, s42
    s_add_u32 s45, s45, 288
    v_add_u32 v12, s45, v12
    v_add_u32 v13, s44, v8
    s_lshl_b32 s45, s3, 11
    s_add_u32 s45, s45, {EX}
    v_lshl_add_u32 v14, v2, 4, s45
    v_xor_b32 v15, 2048, v14
    v_mov_b32 v3, 0xffff0000
    s_waitcnt lgkmcnt(0)
    s_lshl_b32 s46, s16, 4
    s_lshr_b32 s35, s35, s46
    s_lshl_b32 s35, s35, 16
    v_mov_b32 v52, s32
    v_mov_b32 v53, s33
    v_mov_b32 v54, s34
    v_mov_b32 v55, s35
    s_waitcnt vmcnt(5)
    ''')
    k.stamp(1)
    assert EX % 4096 == 0 and EX >= HB + 2 * HCH
    H = 56
    for j in range(4):
        k(f'v_lshlrev_b32 v{H+2*j}, 16, v{X+j}\nv_and_b32 v{H+2*j+1}, v3, v{X+j}')
    for e in range(8): k(f'v_sub_f32 v{H+e}, v{H+e}, v{ST+2*e}')
    for e in range(8): k(f'v_mul_f32 v{H+e}, v{H+e}, v{ST+2*e+1}')
    for e in range(8): k(f'v_fma_f32 v{H+e}, v{H+e}, v53, v52')
    for j in range(4): k(f'v_cvt_pk_bf16_f32 v{X+j}, v{H+2*j}, v{H+2*j+1}')
    k(f'ds_write_b128 v10, {v(X,4)}')
    k('s_waitcnt vmcnt(2)')
    k(f'ds_write_b128 v9, {v(D0,4)}\nds_write_b128 v9, {v(D1,4)} offset:{2*KCS}')
    for j in range(4): k(f'v_alignbit_b32 v{H+j}, v{D1+j}, v{D0+j}, 16')
    k(f'ds_write_b128 v9, {v(H,4)} offset:{KCS}')
    for j in range(4): k(f'v_alignbit_b32 v{H+4+j}, v{D2+j}, v{D1+j}, 16')
    k(f'ds_write_b128 v9, {v(H+4,4)} offset:{3*KCS}')
    k.stamp(2)
    k(f'''s_waitcnt lgkmcnt(0)
    s_barrier''')
    k.stamp(3)
    k(f'''s_bitcmp1_b32 s3, 1
    s_cbranch_scc1 L_k2_set1''')
    ACC = 16
    slots = [32, 36, 40, 44] + [56 + 4*i for i in range(18)]
    def conv_path(blocks):
        mf = []; fl = {}
        qmax = max(blocks)
        for m0 in (0, 2, 4, 6):
            for q in range(qmax + 1):
                fl[('A', m0, q)] = (lambda r, m0=m0, q=q: [f'ds_read_b64 v[{r}:{r+1}], v11 offset:{3776 - 32*m0 - 512*q}',
                                                           f'ds_read_b64 v[{r+2}:{r+3}], v11 offset:{3776 - 32*m0 - 512*q + 8}'])
                fl[('B', m0, q)] = (lambda r, m0=m0, q=q: [f'ds_read_b128 v[{r}:{r+3}], v12 offset:{192 - 32*m0 + 512*q}'])
            for q in range(qmax + 1):
                for bi, c in enumerate(blocks):
                    if q <= c: mf.append((ACC + 4*bi, ('A', m0, q), ('B', m0, c - q)))
        mfma_stream(k, mf, fl, slots, per_gap=2, pre=12)
    conv_path([7, 6, 1, 0])
    k('s_branch L_k2_conv_done\nL_k2_set1:')
    conv_path([5, 4, 3, 2])
    k('L_k2_conv_done:')
    k.stamp(4)
    k(f'''s_nop 7
    ds_read_b64 v[56:57], v13 offset:512
    ds_read_b64 v[58:59], v13
    s_bitcmp1_b32 s3, 0
    s_cbranch_scc1 L_k2_mh1
    ds_write_b128 v14, v[24:27]
    ds_write_b128 v14, v[28:31] offset:1024
    s_branch L_k2_sent
    L_k2_mh1:
    ds_write_b128 v14, v[16:19]
    ds_write_b128 v14, v[20:23] offset:1024''')
    for j in range(8): k(f'v_mov_b32 v{16+j}, v{24+j}')
    k(f'''L_k2_sent:
    s_waitcnt lgkmcnt(0)
    s_barrier
    ds_read_b128 v[24:27], v15
    ds_read_b128 v[28:31], v15 offset:1024
    s_waitcnt vmcnt(0)''')
    HF = 60; XF = 68
    for j in range(4):
        k(f'v_lshlrev_b32 v{HF+2*j}, 16, v{56+j}\nv_and_b32 v{HF+2*j+1}, v3, v{56+j}')
        k(f'v_lshlrev_b32 v{XF+2*j}, 16, v{XE+j}\nv_and_b32 v{XF+2*j+1}, v3, v{XE+j}')
    def rnd(base):
        for j in range(4): k(f'v_cvt_pk_bf16_f32 v{76+j}, v{base+2*j}, v{base+2*j+1}')
        for j in range(4): k(f'v_lshlrev_b32 v{base+2*j}, 16, v{76+j}\nv_and_b32 v{base+2*j+1}, v3, v{76+j}')
    if MIMIC_X1:
        for e in range(8): k(f'v_mul_f32 v{HF+e}, v{HF+e}, v55')
        rnd(HF)
    k('s_waitcnt lgkmcnt(0)')
    for e in range(8): k(f'v_add_f32 v{16+e}, v{16+e}, v{24+e}')
    if MIMIC_X1:
        rnd(16)
        for e in range(8): k(f'v_add_f32 v{16+e}, v{16+e}, v{HF+e}')
        rnd(16)
        for e in range(8): k(f'v_mul_f32 v{16+e}, v{16+e}, v54')
        rnd(16)
        for e in range(8): k(f'v_add_f32 v{16+e}, v{16+e}, v{XF+e}')
    else:
        for e in range(8): k(f'v_fmac_f32 v{16+e}, v{HF+e}, v55')
        for e in range(8): k(f'v_fma_f32 v{16+e}, v{16+e}, v54, v{XF+e}')
    for j in range(4): k(f'v_cvt_pk_bf16_f32 v{76+j}, v{16+2*j}, v{17+2*j}')
    k(f'''buffer_store_dwordx2 v[76:77], v8, s[36:39], 0 offen offset:512
    buffer_store_dwordx2 v[78:79], v8, s[36:39], 0 offen''')
    k.stamp(5)
    k.dump_stamps(7, DIAG)
    k('s_endpgm')

    GU = 16; FR = 48; DD = 80
    k(f'''L_k2_pgu:
    s_load_dwordx4 s[8:11], s[0:1], {KA['wg']}
    s_sub_u32 s16, s2, {N_CONV}
    s_lshl_b32 s16, s16, 3
    s_add_u32 s16, s16, s3
    s_and_b32 s17, s16, 15
    s_lshr_b32 s18, s16, 4
    v_lshrrev_b32 v3, 3, v2
    v_and_b32 v4, 7, v2
    v_mul_u32_u24 v5, 3584, v3
    v_lshl_add_u32 v5, v4, 4, v5
    s_mul_i32 s19, s17, {32*3584}
    s_lshl_b32 s20, s18, 7
    s_add_u32 s19, s19, s20
    v_lshlrev_b32 v6, 2, v3
    v_lshrrev_b32 v7, 4, v2
    v_lshlrev_b32 v8, 4, v7
    s_lshl_b32 s21, s17, 7
    s_lshl_b32 s22, s17, 6
    s_waitcnt lgkmcnt(0)''')
    k.srd(24, 8, 512 * 3584)
    k.srd(28, 10, 512 * 3584)
    for i in range(4):
        k(f'''buffer_load_dwordx4 {v(GU+8*i,4)}, v5, s[24:27], s19 offen
        buffer_load_dwordx4 {v(GU+8*i+4,4)}, v5, s[28:31], s19 offen
        s_add_u32 s19, s19, {8*3584}''')
    k.srd(32, 4, 512 * 4, MODF + 4 * 2048)
    k.srd(36, 4, 512 * 2, MODH + 3 * 1024)
    for i in range(4):
        k(f'buffer_load_dword v{112+i}, v6, s[32:35], s21 offen offset:{32*i}')
    k(f'buffer_load_dwordx4 v[116:119], v8, s[36:39], s22 offen')
    k.srd(40, 4, 16 * 16 * 14 * 1024, WP)
    k.srd(44, 4, 16 * 224 * 128, CSB)
    k(f'''s_lshl_b32 s23, s3, 13
    v_and_b32 v9, 3, v3
    v_xor_b32 v9, v9, v4
    v_lshlrev_b32 v9, 5, v9
    v_lshl_add_u32 v9, v3, 8, v9
    v_add_u32 v9, s23, v9
    v_xor_b32 v10, 128, v9
    v_add_u32 v10, 2048, v10
    v_add_u32 v11, 4096, v9
    v_add_u32 v12, 4096, v10
    v_bfe_u32 v13, v2, 2, 2
    v_and_b32 v14, 1, v7
    v_lshl_or_b32 v14, v14, 2, v13
    v_lshlrev_b32 v14, 5, v14
    v_lshl_add_u32 v13, v7, 3, v13
    v_lshl_add_u32 v13, v13, 8, v14
    v_and_b32 v14, 3, v2
    v_lshl_add_u32 v13, v14, 3, v13
    v_add_u32 v13, s23, v13
    v_mov_b32 v120, 0x3f803f80
    v_mov_b32 v121, v120
    v_mov_b32 v122, v120
    v_mov_b32 v123, v120
    v_mov_b32 v3, 0xffff0000
    v_lshlrev_b32 v15, 4, v2
    s_mul_i32 s48, s17, {224*128}
    s_lshl_b32 s49, s18, 10
    s_add_u32 s48, s48, s49
    ''')
    for i in range(4):
        k(f's_waitcnt vmcnt({11 - 2*i})')
        for j in range(4):
            k(f'ds_write2_b32 v{9+i}, v{GU+8*i+j}, v{GU+8*i+4+j} offset0:{2*j} offset1:{2*j+1}')
    k('s_waitcnt lgkmcnt(0)')
    k.stamp(1)
    def tr_reads():
        for c in range(8):
            k(f'v_xor_b32 v14, {32*c}, v13')
            k(f'ds_read_b64_tr_b16 v[{FR+4*c}:{FR+4*c+1}], v14\nds_read_b64_tr_b16 v[{FR+4*c+2}:{FR+4*c+3}], v14 offset:1024')
    tr_reads()
    k('s_waitcnt vmcnt(0)')
    for c in range(8):
        k(f's_waitcnt lgkmcnt({14-2*c})\nv_mfma_f32_16x16x32_bf16 {v(DD+4*c,4)}, {v(FR+4*c,4)}, v[116:119], 0')
    k.stamp(2)
    for i in range(4):
        for m in range(2):
            b = GU + 8*i + 4*m
            for j in range(4):
                k(f'''v_lshlrev_b32 v124, 16, v{b+j}
                v_and_b32 v125, v3, v{b+j}
                v_mul_f32 v124, v124, v{112+i}
                v_mul_f32 v125, v125, v{112+i}
                v_cvt_pk_bf16_f32 v{FR+8*i+2*j+m}, v124, v125''')
        k(f'ds_write_b128 v{9+i}, {v(FR+8*i,4)}\nds_write_b128 v{9+i}, {v(FR+8*i+4,4)} offset:16')
    k(f's_mov_b32 exec_lo, 0x00010001\ns_mov_b32 exec_hi, 0x00010001')
    for c in range(8):
        k(f'buffer_store_dwordx4 {v(DD+4*c,4)}, v8, s[44:47], s48 offen offset:{128*c+64}')
    k('s_mov_b64 exec, -1\ns_waitcnt lgkmcnt(0)')
    k.stamp(3)
    tr_reads()
    k(f's_lshl_b32 s50, s18, 3\ns_mul_i32 s51, s17, {14*1024}')
    for c in range(8):
        k(f'''s_add_u32 s52, s50, {c}
        s_mul_i32 s53, s52, 4682
        s_lshr_b32 s53, s53, 16
        s_mul_i32 s54, s53, {16*14 - 14}
        s_add_u32 s52, s52, s54
        s_lshl_b32 s52, s52, 10
        s_add_u32 s52, s52, s51
        s_waitcnt lgkmcnt({14-2*c})
        buffer_store_dwordx4 {v(FR+4*c,4)}, v15, s[40:43], s52 offen
        v_mfma_f32_16x16x32_bf16 {v(GU+4*c,4)}, {v(FR+4*c,4)}, v[120:123], 0''')
    k(f's_mov_b32 exec_lo, 0x00010001\ns_mov_b32 exec_hi, 0x00010001')
    for c in range(8):
        k(f'buffer_store_dwordx4 {v(GU+4*c,4)}, v8, s[44:47], s48 offen offset:{128*c}')
    k.stamp(4); k.stamp(5)
    k.dump_stamps(7, DIAG)
    k('s_endpgm')
    for gb in range(224): assert (gb * 4682) >> 16 == gb // 14

    k(f'''L_k2_pwd:
    s_load_dwordx2 s[8:9], s[0:1], {KA['wd']}
    s_sub_u32 s16, s2, {N_CONV + N_PGU}
    s_lshl_b32 s16, s16, 3
    s_add_u32 s16, s16, s3
    s_mul_i32 s18, s16, 1171
    s_lshr_b32 s18, s18, 16
    s_mul_i32 s19, s18, 56
    s_sub_u32 s17, s16, s19
    s_sub_u32 s20, s17, 32
    s_mul_i32 s21, s20, 21846
    s_lshr_b32 s21, s21, 16
    s_mul_i32 s22, s21, 25
    s_add_u32 s22, s22, s20
    s_add_u32 s22, s22, 4
    s_mul_i32 s23, s17, 7
    s_cmp_lt_u32 s17, 32
    s_cselect_b32 s22, s23, s22
    s_mov_b32 s23, {7*8*1024}
    s_cselect_b32 s23, {8*1024}, s23
    s_lshl_b32 s22, s22, 13
    s_lshl_b32 s19, s18, 8
    s_add_u32 s22, s22, s19
    v_lshrrev_b32 v3, 4, v2
    v_and_b32 v4, 15, v2
    v_lshlrev_b32 v5, 10, v3
    v_lshl_add_u32 v5, v4, 4, v5
    s_waitcnt lgkmcnt(0)''')
    for it in range(224): assert (it * 1171) >> 16 == it // 56
    for x in range(24): assert (x * 21846) >> 16 == x // 3 and gb_of(32 + x, 0) == (x // 3) * 25 + x + 4
    k.srd(24, 8, 1792 * 1024)
    for i in range(4):
        k(f'''buffer_load_dwordx4 {v(16+8*i,4)}, v5, s[24:27], s22 offen
        s_add_u32 s19, s22, 4096
        buffer_load_dwordx4 {v(20+8*i,4)}, v5, s[24:27], s19 offen
        s_add_u32 s22, s22, s23''')
    k.srd(40, 4, 32 * 56 * 1024, WD)
    k(f'''s_lshl_b32 s23, s3, 13
    v_lshlrev_b32 v9, 2, v3
    v_xor_b32 v9, v9, v4
    v_lshlrev_b32 v9, 4, v9
    v_lshl_add_u32 v9, v3, 8, v9
    v_add_u32 v9, s23, v9
    v_bfe_u32 v10, v2, 3, 1
    v_bfe_u32 v11, v2, 2, 1
    v_lshl_add_u32 v11, v3, 1, v11
    v_lshl_add_u32 v10, v10, 3, v11
    v_and_b32 v11, 3, v11
    v_lshlrev_b32 v11, 2, v11
    v_and_b32 v12, 3, v2
    v_xor_b32 v11, v11, v12
    v_lshlrev_b32 v11, 4, v11
    v_lshl_add_u32 v13, v10, 8, v11
    v_add_u32 v13, s23, v13
    v_lshlrev_b32 v15, 4, v2
    s_mul_i32 s48, s18, {8*56}
    s_add_u32 s48, s48, s17
    s_lshl_b32 s48, s48, 10''')
    for i in range(8):
        k(f's_waitcnt vmcnt({7-i})\nds_write_b128 v9, {v(16+4*i,4)} offset:{1024*i}')
    k('s_waitcnt lgkmcnt(0)')
    k.stamp(1); k.stamp(2); k.stamp(3); k.stamp(4); k.stamp(5)
    for c in range(8):
        if c % 2 == 0: k(f'v_xor_b32 v14, {64*(c//2)}, v13')
        k(f'ds_read_b64_tr_b16 v[{FR+4*c}:{FR+4*c+1}], v14 offset:{8*(c%2)}\nds_read_b64_tr_b16 v[{FR+4*c+2}:{FR+4*c+3}], v14 offset:{4096+8*(c%2)}')
    for c in range(8):
        k(f's_waitcnt lgkmcnt({14-2*c})\nbuffer_store_dwordx4 {v(FR+4*c,4)}, v15, s[40:43], s48 offen\ns_add_u32 s48, s48, {56*1024}')
    k.dump_stamps(7, DIAG)
    k('L_k2_end:\ns_endpgm')
    return k

if __name__ == '__main__':
    from k1 import build_k1
    k1 = build_k1(); k2 = build_k2()
    emit([k1, k2], [k1, k2], 'test_k2.s')
    k2 = build_k2(diag=True)
    emit([k1, k2], [k1, k2], 'test_k2d.s')
```

```python
from asmgen import *
from layout import *

SLOT = 45056; BOFF = 28672
CONST = 3 * SLOT
STATP = CONST + 2048
STATF = STATP + 4096
K3_LDS = STATF + 1024
NLOG2E = 0xbfb8aa3b

def build_k3(diag=False):
    k = Kernel('k3_kernel', 256, 512, K3_LDS, vgpr=256, sgpr=96 if diag else 64)
    k.diag = diag
    k.stamp(0)
    k(f'''
    s_cmp_ge_u32 s2, 256
    s_cbranch_scc1 L_k3_end
    s_load_dwordx2 s[4:5], s[0:1], {KA['ws']}
    v_lshrrev_b32 v1, 6, v0
    v_and_b32 v2, 63, v0
    v_readfirstlane_b32 s3, v1
    s_and_b32 s16, s2, 1
    s_lshl_b32 s16, s16, 3
    s_bfe_u32 s17, s2, 0x30003
    s_add_u32 s16, s16, s17
    s_bfe_u32 s17, s2, 0x20001
    s_lshl_b32 s17, s17, 2
    s_lshr_b32 s18, s2, 6
    s_add_u32 s17, s17, s18
    v_and_b32 v3, 15, v2
    v_lshrrev_b32 v4, 4, v2
    s_cmp_ge_u32 s3, 4
    s_cbranch_scc1 L_k3_loader
    ''')
    ACC = 16
    F = [128, 172]
    def acc(blk, b): return ACC + 4 * (4 * blk + b)
    k(f'''
    s_and_b32 s18, s3, 1
    s_lshr_b32 s19, s3, 1
    s_mul_i32 s20, s18, {7*1024}
    v_lshl_add_u32 v5, v2, 4, s20
    v_bfe_u32 v6, v2, 2, 2
    v_and_b32 v7, 1, v4
    v_lshl_or_b32 v7, v7, 2, v6
    s_lshl_b32 s21, s19, 2
    v_xor_b32 v7, s21, v7
    v_lshlrev_b32 v7, 5, v7
    v_lshl_add_u32 v6, v4, 3, v6
    v_lshl_add_u32 v6, v6, 8, v7
    v_and_b32 v7, 3, v2
    v_lshl_add_u32 v6, v7, 3, v6
    v_add_u32 v6, {BOFF}, v6
    v_xor_b32 v7, 32, v6
    v_xor_b32 v8, 64, v6
    v_xor_b32 v9, 96, v6
    s_lshl_b32 s21, s19, 9
    s_add_u32 s21, s21, {STATF}
    v_lshl_add_u32 v10, v3, 3, s21
    s_mul_i32 s21, s18, {7*128}
    s_add_u32 s21, s21, {CONST}
    v_lshl_add_u32 v11, v4, 4, s21
    v_lshlrev_b32 v12, 4, v2
    s_lshl_b32 s22, s17, 1
    s_add_u32 s22, s22, s18
    s_lshl_b32 s23, s16, 3
    s_lshl_b32 s24, s19, 2
    s_add_u32 s23, s23, s24
    s_mul_i32 s23, s23, {56*1024}
    s_lshl_b32 s24, s22, 10
    s_add_u32 s24, s24, s23
    s_lshr_b32 s25, s22, 2
    s_mul_i32 s25, s25, 3072
    s_add_u32 s25, s25, {32*1024}
    s_add_u32 s25, s25, s23
    s_and_b32 s26, s22, 3
    s_lshl_b32 s26, s26, 2
    s_add_u32 s25, s25, s26
    s_waitcnt lgkmcnt(0)''')
    k.srd(8, 4, 128 * 56 * 1024, HH)
    def reads(n):
        fs = F[n % 2]; ks2 = n % 2
        out = []
        for b in range(4):
            out.append(f'ds_read_b64_tr_b16 v[{fs+28+4*b}:{fs+29+4*b}], v{6+b} offset:{8192*ks2}')
            out.append(f'ds_read_b64_tr_b16 v[{fs+30+4*b}:{fs+31+4*b}], v{6+b} offset:{8192*ks2+1024}')
        for blk in range(7):
            out.insert(min(len(out), 2 + 3*blk), f'ds_read_b128 v[{fs+4*blk}:{fs+4*blk+3}], v5 offset:{(14*ks2+blk)*1024}')
        return out
    def advance(st):
        d = SLOT if st % 3 else -2 * SLOT
        return [f'v_add_u32 v{r}, {d & 0xffffffff}, v{r}' for r in range(5, 10)]
    k('s_barrier')
    k.stamp(1)
    for x in reads(0): k(x)
    for n in range(16):
        k('s_waitcnt lgkmcnt(0)')
        side = []
        if n % 2 == 1:
            k('s_barrier')
            if n < 15: side += advance((n + 1) // 2)
        if n < 15: side += reads(n + 1)
        fs = F[n % 2]
        for blk in range(7):
            for b in range(4):
                cin = '0' if n == 0 else v(acc(blk, b), 4)
                k(f'v_mfma_f32_16x16x32_bf16 {v(acc(blk,b),4)}, {v(fs+4*blk,4)}, {v(fs+28+4*b,4)}, {cin}')
                if side: k(side.pop(0))
        assert not side
    k.stamp(2)
    k('s_barrier')
    S = 128; R2 = 136; C = 144; T = 160; P = 192
    for b in range(4): k(f'ds_read_b64 v[{S+2*b}:{S+2*b+1}], v10 offset:{128*b}')
    k(f'ds_read_b128 {v(C,4)}, v11\nds_read_b128 {v(C+4,4)}, v11 offset:64')
    k(f's_mov_b32 s27, {NLOG2E}\ns_waitcnt lgkmcnt(2)')
    for b in range(4): k(f'v_mul_f32 v{R2+2*b}, s27, v{S+2*b+1}')
    for blk in range(7):
        c = C + 8 * (blk % 2)
        k('s_waitcnt lgkmcnt(0)')
        if blk < 6:
            cn = C + 8 * ((blk + 1) % 2)
            k(f'ds_read_b128 {v(cn,4)}, v11 offset:{128*(blk+1)}\nds_read_b128 {v(cn+4,4)}, v11 offset:{128*(blk+1)+64}')
        for b in range(4):
            A_ = acc(blk, b); t = T + 4*b
            k(f'v_pk_fma_f32 {v(t,2)}, {v(S+2*b,2)}, {v(c,2)}, {v(A_,2)} op_sel_hi:[0,1,1]')
            k(f'v_pk_fma_f32 {v(t+2,2)}, {v(S+2*b,2)}, {v(c+2,2)}, {v(A_+2,2)} op_sel_hi:[0,1,1]')
        for b in range(4):
            t = T + 4*b
            k(f'v_pk_fma_f32 {v(t,2)}, {v(R2+2*b,2)}, {v(t,2)}, {v(c+4,2)} op_sel_hi:[0,1,1]')
            k(f'v_pk_fma_f32 {v(t+2,2)}, {v(S+2*b,2)}, {v(t+2,2)}, {v(c+6,2)} op_sel:[1,0,0] op_sel_hi:[1,1,1]')
        for b in range(4):
            t = T + 4*b
            k(f'v_exp_f32 v{t}, v{t}\nv_exp_f32 v{t+1}, v{t+1}')
        for b in range(4):
            t = T + 4*b
            k(f'v_pk_add_f32 {v(t,2)}, {v(t,2)}, 1.0 op_sel_hi:[1,0]')
        for b in range(4):
            t = T + 4*b
            k(f'v_rcp_f32 v{t}, v{t}\nv_rcp_f32 v{t+1}, v{t+1}')
        for b in range(4):
            t = T + 4*b
            k(f'v_pk_mul_f32 {v(t,2)}, {v(t,2)}, {v(t+2,2)}')
        for b in range(4):
            t = T + 4*b
            k(f'v_cvt_pk_bf16_f32 v{P+8*b+blk}, v{t}, v{t+1}')
        if blk == 3:
            for b in range(4):
                k(f'buffer_store_dwordx4 {v(P+8*b,4)}, v12, s[8:11], s24 offen\ns_add_u32 s24, s24, {56*1024}')
        if blk >= 4:
            k('s_mov_b32 s24, s25')
            for b in range(4):
                k(f'buffer_store_dword v{P+8*b+blk}, v12, s[8:11], s24 offen offset:{1024*(blk-4)}\ns_add_u32 s24, s24, {56*1024}')
    k.stamp(3); k.stamp(4); k.stamp(5)
    k.dump_stamps(7, DIAG)
    k('s_endpgm')

    SS = 16; QQ = 24; RD = 32; UN = 48; CL = 64
    k(f'''L_k3_loader:
    s_sub_u32 s18, s3, 4
    s_mul_i32 s19, s17, {16*14*1024}
    v_lshlrev_b32 v5, 4, v2
    v_lshlrev_b32 v6, 1, v4
    v_xor_b32 v6, v6, v3
    v_lshlrev_b32 v6, 4, v6
    v_lshl_add_u32 v7, v4, 12, v6
    v_xor_b32 v8, 128, v7
    s_mul_i32 s20, s18, {7*1024}
    s_lshl_b32 s21, s18, 16
    s_lshl_b32 s22, s16, 8
    s_add_u32 s21, s21, s22
    s_lshl_b32 s22, s18, 12
    s_add_u32 s22, s22, {BOFF}
    s_waitcnt lgkmcnt(0)
    s_add_u32 s6, s4, s19
    s_addc_u32 s7, s5, 0''')
    k.srd(8, 6, 16 * 14 * 1024, WP)
    k.srd(12, 4, 512 * 4096, X1T)
    def dma(st):
        sl = (st % 3) * SLOT
        k(f's_add_u32 m0, s20, {sl}\ns_add_u32 s23, s20, {st*BOFF}')
        for i in range(4): k(f'buffer_load_dwordx4 v5, s[8:11], s23 offen offset:{1024*i} lds')
        k(f's_add_u32 m0, s22, {sl}\ns_add_u32 s24, s21, {st*64*4096}')
        k(f'buffer_load_dwordx4 v7, s[12:15], s24 offen lds')
        k(f's_add_u32 m0, s22, {sl+1024}\ns_add_u32 s24, s21, {st*64*4096 + 4*4096}')
        k(f'buffer_load_dwordx4 v7, s[12:15], s24 offen lds')
        k(f's_add_u32 m0, s20, {sl+4096}\ns_add_u32 s23, s20, {st*BOFF+4096}')
        for i in range(3): k(f'buffer_load_dwordx4 v5, s[8:11], s23 offen offset:{1024*i} lds')
        k(f's_add_u32 m0, s22, {sl+2048}\ns_add_u32 s24, s21, {st*64*4096 + 8*4096}')
        k(f'buffer_load_dwordx4 v8, s[12:15], s24 offen lds')
        k(f's_add_u32 m0, s22, {sl+3072}\ns_add_u32 s24, s21, {st*64*4096 + 12*4096}')
        k(f'buffer_load_dwordx4 v8, s[12:15], s24 offen lds')
    dma(0); dma(1); dma(2)
    k.srd(28, 4, 16 * 224 * 128, CSB)
    k(f'''v_and_b32 v9, 31, v2
    v_min_u32 v9, 27, v9
    s_mul_i32 s25, s18, 28
    v_add_u32 v9, s25, v9
    v_lshlrev_b32 v10, 4, v9
    v_lshrrev_b32 v11, 5, v2
    v_mul_u32_u24 v11, {8*224*128}, v11
    v_add_u32 v11, v11, v10
    s_mul_i32 s25, s17, {14*128}''')
    for i in range(8):
        k(f'buffer_load_dwordx4 {v(CL+4*i,4)}, v11, s[28:31], s25 offen\ns_add_u32 s25, s25, {224*128}')
    k.srd(32, 4, 2048 * 1024, X1R)
    k(f'''v_lshl_add_u32 v12, v4, 8, v6
    v_add_u32 v12, s22, v12
    v_xor_b32 v13, 128, v12
    v_bfe_u32 v14, v2, 2, 2
    v_and_b32 v15, 1, v4
    v_lshl_or_b32 v15, v15, 2, v14
    s_lshl_b32 s26, s18, 1
    v_xor_b32 v15, s26, v15
    v_lshlrev_b32 v15, 5, v15
    v_lshl_add_u32 v14, v4, 3, v14
    v_lshl_add_u32 v14, v14, 8, v15
    v_and_b32 v15, 3, v2
    v_lshl_add_u32 v14, v15, 3, v14
    s_and_b32 s26, s17, 1
    s_lshl_b32 s26, s26, 13
    s_add_u32 s26, s26, {BOFF}
    v_add_u32 v14, s26, v14
    v_lshlrev_b32 v15, 10, v3
    v_lshl_add_u32 v15, v4, 4, v15
    s_lshl_b32 s26, s16, 17
    s_lshl_b32 s27, s18, 15
    s_add_u32 s26, s26, s27
    s_lshl_b32 s27, s17, 6
    s_add_u32 s26, s26, s27
    s_lshr_b32 s36, s17, 1
    v_mov_b32 v1, 0xffff0000''')
    for j in range(16): k(f'v_mov_b32 v{SS+j}, 0')
    for st in range(8):
        sl = (st % 3) * SLOT
        k(f's_waitcnt vmcnt({[30, 19, 11, 11, 11, 11, 11, 0][st]})\ns_barrier')
        if st == 0: k.stamp(1)
        if 1 <= st <= 5: dma(st + 2)
        k(f'v_add_u32 v96, {sl}, v12\nv_add_u32 v97, {sl}, v13')
        for i in range(4): k(f'ds_read_b128 {v(RD+4*i,4)}, v{96 + i//2} offset:{1024*i}')
        lab = k.label('nox')
        k(f'''s_cmp_lg_u32 s36, {st}
        s_cbranch_scc1 {lab}
        v_add_u32 v98, {sl}, v14
        v_xor_b32 v99, 32, v98
        ds_read_b64_tr_b16 v[100:101], v98
        ds_read_b64_tr_b16 v[102:103], v98 offset:1024
        ds_read_b64_tr_b16 v[104:105], v99
        ds_read_b64_tr_b16 v[106:107], v99 offset:1024
        s_add_u32 s27, s26, {16*1024}
        s_waitcnt lgkmcnt(0)
        buffer_store_dwordx4 v[100:103], v15, s[32:35], s26 offen
        buffer_store_dwordx4 v[104:107], v15, s[32:35], s27 offen
        {lab}:''')
        for i in range(4):
            k(f's_waitcnt lgkmcnt({3-i})')
            for j in range(4): k(f'v_lshlrev_b32 v{UN+2*j}, 16, v{RD+4*i+j}\nv_and_b32 v{UN+2*j+1}, v1, v{RD+4*i+j}')
            for e in range(8): k(f'v_add_f32 v{SS+e}, v{SS+e}, v{UN+e}\nv_fmac_f32 v{QQ+e}, v{UN+e}, v{UN+e}')
        if st == 2:
            for i in range(1, 8):
                for e in range(4): k(f'v_add_f32 v{CL+e}, v{CL+e}, v{CL+4*i+e}')
            for e in range(4): k(f'v_mov_b32 v{CL+4+e}, v{CL+e}')
            for e in range(4): k(f'v_permlane32_swap_b32 v{CL+e}, v{CL+4+e}')
            for e in range(4): k(f'v_add_f32 v{CL+e}, v{CL+e}, v{CL+4+e}')
            k(f'''v_and_b32 v{CL+4}, 4, v9
            v_cmp_eq_u32 vcc, 0, v{CL+4}
            v_mov_b32 v{CL+5}, {NLOG2E}
            v_cndmask_b32 v{CL+5}, v{CL+5}, 1.0, vcc
            v_mul_f32 v{CL}, v{CL}, v{CL+5}
            v_mul_f32 v{CL+1}, v{CL+1}, v{CL+5}
            v_add_u32 v10, {CONST}, v10
            ds_write_b128 v10, {v(CL,4)}
            s_waitcnt lgkmcnt(0)''')
    for j in range(8): k(f'v_permlane32_swap_b32 v{SS+j}, v{QQ+j}')
    for j in range(8): k(f'v_add_f32 v{SS+j}, v{SS+j}, v{QQ+j}')
    for j in range(4): k(f'v_permlane16_swap_b32 v{SS+j}, v{SS+j+4}')
    for j in range(4): k(f'v_add_f32 v{SS+j}, v{SS+j}, v{SS+j+4}')
    k(f'''v_lshrrev_b32 v5, 1, v4
    v_and_b32 v6, 1, v4
    v_lshlrev_b32 v5, 9, v5
    v_lshl_add_u32 v5, v6, 4, v5
    v_lshl_add_u32 v5, v3, 5, v5
    s_lshl_b32 s26, s18, 10
    s_add_u32 s26, s26, {STATP}
    v_add_u32 v5, s26, v5
    ds_write_b128 v5, {v(SS,4)}
    s_lshl_b32 s26, s18, 8
    s_add_u32 s27, s26, {STATP}
    v_lshl_add_u32 v6, v2, 2, s27
    s_lshl_b32 s26, s18, 9
    s_add_u32 s27, s26, {STATF}
    v_lshl_add_u32 v7, v2, 3, s27
    s_waitcnt lgkmcnt(0)
    s_barrier
    s_cmp_ge_u32 s18, 2
    s_cbranch_scc1 L_k3_e2''')
    for w in range(4): k(f'ds_read_b32 v{32+w}, v6 offset:{1024*w}\nds_read_b32 v{36+w}, v6 offset:{1024*w+512}')
    k(f'''s_waitcnt lgkmcnt(0)
    v_add_f32 v32, v32, v33
    v_add_f32 v34, v34, v35
    v_add_f32 v36, v36, v37
    v_add_f32 v38, v38, v39
    v_add_f32 v32, v32, v34
    v_add_f32 v36, v36, v38
    v_mul_f32 v32, 0x3b000000, v32
    v_mul_f32 v36, 0x3b000000, v36
    v_fma_f32 v36, -v32, v32, v36
    v_max_f32 v36, 0, v36
    v_cvt_pk_bf16_f32 v33, v36, -v32
    v_and_b32 v40, v1, v33
    v_lshlrev_b32 v36, 16, v33
    v_add_f32 v36, 0x3727c5ac, v36
    v_cvt_pk_bf16_f32 v33, v36, v36
    v_and_b32 v36, v1, v33
    v_sqrt_f32 v36, v36
    v_cvt_pk_bf16_f32 v33, v36, v36
    v_and_b32 v36, v1, v33
    v_rcp_f32 v41, v36
    ds_write_b64 v7, v[40:41]
    s_waitcnt lgkmcnt(0)
    L_k3_e2:
    s_barrier''')
    k.stamp(2); k.stamp(3); k.stamp(4); k.stamp(5)
    k.dump_stamps(7, DIAG)
    k('L_k3_end:\ns_endpgm')
    return k
```

```python
from asmgen import *
from layout import *
MIMIC_OUT = False
K4_LDS = 49152

def build_k4(diag=False):
    k = Kernel('k4_kernel', 256, 256, K4_LDS, vgpr=256, sgpr=96 if diag else 64)
    k.diag = diag
    k.stamp(0)
    ACC = 16
    RING = 80
    XR = 240
    GBR = 248
    DEPTH = 5
    k(f'''
    s_cmp_ge_u32 s2, 256
    s_cbranch_scc1 L_k4_end
    s_load_dwordx2 s[4:5], s[0:1], {KA['ws']}
    s_load_dwordx2 s[6:7], s[0:1], {KA['out']}
    v_lshrrev_b32 v1, 6, v0
    v_and_b32 v2, 63, v0
    v_readfirstlane_b32 s3, v1
    s_and_b32 s16, s2, 3
    s_lshl_b32 s16, s16, 3
    s_bfe_u32 s17, s2, 0x30003
    s_add_u32 s16, s16, s17
    s_bfe_u32 s17, s2, 0x10002
    s_lshl_b32 s17, s17, 2
    s_lshr_b32 s18, s2, 6
    s_add_u32 s17, s17, s18
    v_lshlrev_b32 v5, 4, v2
    s_mul_i32 s18, s3, {14*1024}
    s_mul_i32 s19, s16, {4*56*1024}
    s_add_u32 s19, s19, s18
    s_mul_i32 s20, s17, {4*56*1024}
    s_add_u32 s20, s20, s18''')
    for tl in range(4):
        k(f's_add_u32 s21, s3, {tl}\ns_and_b32 s21, s21, 3\ns_mul_i32 s21, s21, {56*1024}\ns_add_u32 s{24+tl}, s19, s21')
    for db in range(4):
        k(f's_add_u32 s{28+db}, s20, {db*56*1024}')
    k('s_waitcnt lgkmcnt(0)')
    k.srd(8, 4, 128 * 56 * 1024, HH)
    k.srd(12, 4, 32 * 56 * 1024, WD)
    def loads(st):
        r = RING + 32 * (st % DEPTH)
        if st and st % 4 == 0:
            for j in range(8): k(f's_add_u32 s{24+j}, s{24+j}, 4096')
        for j in range(4):
            k(f'buffer_load_dwordx4 {v(r+4*j,4)}, v5, s[12:15], s{28+j} offen offset:{1024*(st%4)}')
            k(f'buffer_load_dwordx4 {v(r+16+4*j,4)}, v5, s[8:11], s{24+j} offen offset:{1024*(st%4)}')
    for st in range(DEPTH): loads(st)
    k.srd(32, 4, 2048 * 1024, X1R)
    k.srd(36, 4, 512 * 4, MODF + 5 * 2048)
    k.srd(40, 6, 2048 * 1024)
    k(f'''v_and_b32 v3, 15, v2
    v_lshrrev_b32 v4, 4, v2
    v_lshlrev_b32 v6, 10, v3
    v_lshl_add_u32 v6, v4, 4, v6
    s_lshl_b32 s21, s16, 16
    s_lshl_b32 s22, s3, 14
    s_add_u32 s21, s21, s22
    s_lshl_b32 s22, s17, 7
    s_add_u32 s21, s21, s22
    v_lshlrev_b32 v7, 5, v4
    s_lshl_b32 s22, s17, 8
    buffer_load_dwordx4 {v(XR,4)}, v6, s[32:35], s21 offen
    buffer_load_dwordx4 {v(XR+4,4)}, v6, s[32:35], s21 offen offset:64''')
    for tl in range(1, 4):
        k(f's_add_u32 s23, s3, {tl}\ns_and_b32 s23, s23, 3\ns_mul_i32 s23, s23, 12288\ns_add_u32 s23, s23, {(tl-1)*4096}\nv_add_u32 v{7+tl}, s23, v5')
    k(f's_mul_i32 s23, s3, 12288\nv_add_u32 v11, s23, v5\nv_mov_b32 v1, 0xffff0000')
    issued = DEPTH
    for st in range(14):
        younger = 8 * (min(14, st + DEPTH) - st - 1) + (2 if st < DEPTH else 0)
        r = RING + 32 * (st % DEPTH)
        for db in range(4):
            for tl in range(4):
                j = max(db, tl)
                if (db == 0) or (tl == 0 and False):
                    pass
        order = sorted([(db, tl) for db in range(4) for tl in range(4)], key=lambda x: max(x))
        lastw = -1
        for db, tl in order:
            j = max(db, tl)
            if j != lastw:
                k(f's_waitcnt vmcnt({younger + 2*(3-j)})'); lastw = j
                if st == 0 and j == 0: k.stamp(1)
            a_ = ACC + 4 * (4 * db + tl)
            cin = '0' if st == 0 else v(a_, 4)
            k(f'v_mfma_f32_16x16x32_bf16 {v(a_,4)}, {v(r+4*db,4)}, {v(r+16+4*tl,4)}, {cin}')
        if st + DEPTH < 14: loads(st + DEPTH)
        if st == 9:
            for j in range(4): k(f'buffer_load_dwordx4 {v(RING+32*4+4*j,4)}, v7, s[36:39], s22 offen offset:{(j//2)*128 + (j%2)*16}')
    GB = RING + 32*4
    k.stamp(2)
    for tl in range(1, 4):
        for db in range(4):
            k(f'ds_write_b128 v{7+tl}, {v(ACC+4*(4*db+tl),4)} offset:{1024*db}')
    k('s_waitcnt lgkmcnt(0)\ns_barrier')
    RD = RING
    for i in range(12): k(f'ds_read_b128 {v(RD+4*i,4)}, v11 offset:{1024*i}')
    XF = RING + 48
    k('s_waitcnt vmcnt(0)')
    for j in range(8): k(f'v_lshlrev_b32 v{XF+2*j}, 16, v{XR+j}\nv_and_b32 v{XF+2*j+1}, v1, v{XR+j}')
    for i in range(12):
        k(f's_waitcnt lgkmcnt({11-i})')
        db = i % 4
        for e in range(4): k(f'v_add_f32 v{ACC+16*db+e}, v{ACC+16*db+e}, v{RD+4*i+e}')
    for db in range(4):
        for e in range(4):
            k(f'v_fma_f32 v{XF+4*db+e}, v{ACC+16*db+e}, v{GB+4*db+e}, v{XF+4*db+e}')
    for j in range(8): k(f'v_cvt_pk_bf16_f32 v{XR+j}, v{XF+2*j}, v{XF+2*j+1}')
    k(f'''buffer_store_dwordx4 {v(XR,4)}, v6, s[40:43], s21 offen
    buffer_store_dwordx4 {v(XR+4,4)}, v6, s[40:43], s21 offen offset:64''')
    k.stamp(3); k.stamp(4); k.stamp(5)
    k.dump_stamps(7, DIAG + 0x100000, wpb=4)
    k('L_k4_end:\ns_endpgm')
    return k
```

```python
XT    = 0x0000000
X1T   = 0x0200000
X1R   = 0x0400000
KREV  = 0x0600000
WP    = 0x0800000
WD    = 0x0C00000
HH    = 0x0E00000
STATS = 0x1600000
MODF  = 0x1610000
MODH  = 0x1614000
CSB   = 0x1620000
DIAG  = 0x2000000
WS_USED = 0x1700000
KA = dict(u=0, Are=8, Aim=16, Bre=24, Bim=32, Cre=40, Cim=48, ldt=56, dskip=64, bx=72, wg=80, wu=88, wd=96, c=104, wmod=112, out=120, dbg=128, ws=136)
LOG2E = 0x3fb8aa3b
INV2PI = 0x3e22f983
```

```python
def mfma_stream(k, mfmas, frag_loads, slots, mn='v_mfma_f32_16x16x32_bf16', per_gap=2, first_zero=True, pre=None, extra=None):
    order = []
    last_use = {}
    for i, (acc, fa, fb) in enumerate(mfmas):
        for f in (fa, fb):
            if f not in last_use: order.append(f)
            last_use[f] = i
    free = list(slots)
    where = {}
    done_at = {}
    issued = 0
    nxt = 0
    pending = []
    seen_acc = set()
    def issue(maxn):
        nonlocal issued, nxt, pending
        n = 0
        while n < maxn:
            if not pending:
                if nxt >= len(order) or not free: return
                f = order[nxt]; nxt += 1
                r = free.pop(0); where[f] = r
                ins = frag_loads[f](r)
                pending = [(f, x, j == len(ins) - 1) for j, x in enumerate(ins)]
            f, x, last = pending.pop(0)
            k(x); issued += 1; n += 1
            if last: done_at[f] = issued
    issue(10**6 if pre is None else pre)
    waited = 0
    for i, (acc, fa, fb) in enumerate(mfmas):
        while fa not in done_at or fb not in done_at:
            before = issued
            issue(1)
            assert issued > before, 'out of fragment slots'
        needc = max(done_at[fa], done_at[fb])
        if needc > waited:
            n = min(15, issued - needc)
            k(f's_waitcnt lgkmcnt({n})')
            waited = issued - n
        cin = f'v[{acc}:{acc+3}]' if (acc in seen_acc or not first_zero) else '0'
        seen_acc.add(acc)
        k(f'{mn} v[{acc}:{acc+3}], v[{where[fa]}:{where[fa]+3}], v[{where[fb]}:{where[fb]+3}], {cin}')
        for f in (fa, fb):
            if last_use[f] == i and f in where:
                free.append(where[f])
        if extra: extra(i)
        issue(per_gap)
```

```python
import sys
from asmgen import *
from k1 import build_k1
from k2 import build_k2
from k3 import build_k3
from k4 import build_k4
ks = [build_k1(), build_k2(), build_k3(), build_k4()]
emit(ks, ks, 'full.s')
ks = [build_k1(), build_k2(), build_k3(diag=True), build_k4(diag=True)]
emit(ks, ks, 'fulld.s')
```

```python
import re, os
_here = os.path.dirname(os.path.abspath(__file__))
HEADER = open(os.path.join(_here, '..', 'cdna_kernels', 'adaLN_cond__ssm_conv_s4__glu_gated_glu__prompt.s.ref')).read().split('; Override launch')[0]

def v(i, n=1): return f'v{i}' if n == 1 else f'v[{i}:{i+n-1}]'
def s(i, n=1): return f's{i}' if n == 1 else f's[{i}:{i+n-1}]'
def a(i, n=1): return f'a{i}' if n == 1 else f'a[{i}:{i+n-1}]'

_reg_re = re.compile(r'^(-?)(?:abs\()?\|?([vsa])(?:(\d+)|\[(\d+):(\d+)\])\|?\)?$')
def regs_of(tok):
    tok = tok.strip()
    if tok in ('vcc',): return {('s', 106), ('s', 107)}
    if tok == 'vcc_lo': return {('s', 106)}
    if tok == 'vcc_hi': return {('s', 107)}
    if tok == 'exec': return {('s', 126), ('s', 127)}
    if tok == 'm0': return {('s', 124)}
    m = _reg_re.match(tok)
    if not m: return set()
    k = m.group(2)
    if m.group(3) is not None: return {(k, int(m.group(3)))}
    return {(k, i) for i in range(int(m.group(4)), int(m.group(5)) + 1)}

TRANS = ('v_exp_f32', 'v_log_f32', 'v_rcp_f32', 'v_rsq_f32', 'v_sqrt_f32', 'v_sin_f32', 'v_cos_f32', 'v_rcp_iflag_f32')

class Ins:
    def __init__(self, line):
        self.line = line
        t = line.split(';')[0].strip()
        parts = t.split(None, 1)
        self.mn = parts[0]
        rest = parts[1] if len(parts) > 1 else ''
        ops = []; cur = ''; depth = 0
        for ch in rest:
            if ch == '[': depth += 1
            if ch == ']': depth -= 1
            if ch == ',' and depth == 0: ops.append(cur.strip()); cur = ''
            else: cur += ch
        if cur.strip(): ops.append(cur.strip())
        self.mods = ''
        if ops:
            sp = ops[-1].split(None, 1)
            if len(sp) > 1: ops[-1] = sp[0]; self.mods = sp[1]
        self.ops = ops
        mn = self.mn
        base = re.sub(r'_(e32|e64|sdwa|dpp)$', '', mn)
        self.base = base
        self.is_mfma = mn.startswith('v_mfma')
        self.is_valu = mn.startswith('v_') and not self.is_mfma
        self.is_ds = mn.startswith('ds_')
        self.is_vmem = mn.startswith(('buffer_', 'global_', 'flat_', 'scratch_'))
        self.is_salu = mn.startswith('s_')
        self.is_trans = base in TRANS
        self.is_dpp = mn.endswith('_dpp') or any(k in self.mods for k in ('row_shr', 'row_ror', 'row_shl', 'quad_perm', 'row_mirror', 'row_half_mirror', 'row_bcast', 'row_newbcast', 'wave_'))
        self.is_permlane = base.startswith('v_permlane')
        self.is_lane = base in ('v_readlane_b32', 'v_readfirstlane_b32', 'v_writelane_b32')
        self.opsel_moves = ('sdwa' in mn and 'dst_sel:DWORD' not in self.mods) or (('op_sel' in self.mods) and not base.startswith('v_pk_') and not self.is_mfma)
        W = set(); R = set()
        o = [regs_of(x) for x in ops]
        self.srcA = self.srcB = self.srcC = set()
        self.store_data = set()
        self.lds_dma = False
        if self.is_mfma:
            W = o[0]; self.srcA, self.srcB, self.srcC = o[1], o[2], o[3]; R = o[1] | o[2] | o[3]
            self.passes = 8 if '32x32' in mn else 4
            if '_f32_32x32x2_f32' in mn or '16x16x4_f32' in mn: raise Exception('sgemm hazards not modelled')
        elif self.is_valu:
            if self.is_permlane and 'swap' in base:
                W = o[0] | o[1]; R = o[0] | o[1]
            elif base.startswith('v_cmp'):
                W = o[0]; R = set().union(*o[1:])
                if base.startswith('v_cmpx'): W = W | regs_of('exec')
            elif base in ('v_add_co_u32', 'v_sub_co_u32', 'v_addc_co_u32', 'v_subb_co_u32', 'v_mad_u64_u32', 'v_div_scale_f32'):
                W = o[0] | o[1]; R = set().union(*o[2:])
            else:
                W = o[0]; R = set().union(*o[1:]) if len(o) > 1 else set()
                if base in ('v_fmac_f32', 'v_dot2c_f32_bf16', 'v_writelane_b32', 'v_pk_fmac_f16') or self.is_dpp or 'sdwa' in mn: R = R | o[0]
                if base == 'v_cndmask_b32' and len(ops) == 3: R = R | regs_of('vcc')
        elif self.is_ds:
            if base.startswith(('ds_read', 'ds_bpermute', 'ds_permute', 'ds_swizzle')):
                W = o[0]; R = set().union(*o[1:])
                if 'd16' in base: R = R | o[0]
            else:
                R = set().union(*o)
        elif self.is_vmem:
            lds = re.search(r'\blds\b', self.mods) is not None or '_load_lds_' in base
            self.lds_dma = lds
            if 'load' in base and not lds:
                W = o[0]; R = set().union(*o[1:])
                if 'd16' in base: R = R | o[0]
            elif lds:
                R = set().union(*o) | regs_of('m0')
            else:
                R = set().union(*o)
                if 'atomic' in base and 'sc0' in self.mods: W = o[0] if base.startswith('buffer') else o[0]
                if base.startswith('buffer_store'): self.store_data = o[0]
                elif base.startswith('global_store'): self.store_data = o[1]
                if not (base.endswith('x3') or base.endswith('x4')): self.store_data = set()
        elif self.is_salu:
            if base.startswith(('s_cmp', 's_cbranch', 's_branch', 's_waitcnt', 's_nop', 's_barrier', 's_endpgm', 's_setprio', 's_sleep', 's_bitcmp')):
                R = set().union(*o) if o else set()
            else:
                W = o[0] if o else set(); R = set().union(*o[1:]) if len(o) > 1 else set()
                if 'saveexec' in base: W = W | regs_of('exec')
        self.W = W; self.R = R
        self.states = 1
        if base == 's_nop': self.states = int(ops[0], 0) + 1

def need(p, c):
    n = 0
    vW = {r for r in p.W if r[0] != 's'}
    sW = {r for r in p.W if r[0] == 's'}
    if p.is_valu:
        if c.is_mfma and (vW & c.R): n = max(n, 2)
        if c.is_valu:
            if p.is_trans and not c.is_trans and (vW & c.R): n = max(n, 1)
            if p.is_trans and c.is_trans and (vW & c.R): n = max(n, 1)
            if c.is_dpp and (vW & c.R): n = max(n, 2)
            if c.is_permlane and (vW & c.R): n = max(n, 2)
            if c.is_lane and (vW & c.R): n = max(n, 1)
            if p.opsel_moves and (vW & (c.R | c.W)): n = max(n, 1)
            if sW & c.R: n = max(n, 4 if c.is_lane else 2)
            if (sW & regs_of('exec')):
                n = max(n, 5 if c.is_dpp else 4 if (c.is_lane or c.is_permlane) else 0)
        if c.is_mfma and (sW & regs_of('exec')): n = max(n, 4)
        if c.is_vmem and (sW & c.R): n = max(n, 5)
        if c.is_salu and (sW & c.R): n = max(n, 2)
        if p.is_trans and (c.is_vmem or c.is_ds) and (vW & c.R): n = max(n, 1)
        if p.base.startswith('v_dot2') and (vW & (c.R | c.W)):
            same = c.base == p.base and not (vW & set().union(*[regs_of(x) for x in c.ops[1:3]]))
            if not same: n = max(n, 3)
    if p.is_mfma:
        big = 12 if p.passes == 8 else 8
        if c.is_mfma:
            if p.W & (c.srcA | c.srcB): n = max(n, big)
            if p.W & c.srcC and not (p.W == c.srcC and p.passes == c.passes): n = max(n, 10 if p.passes == 8 else 6)
            if p.W & c.W and not (p.W & c.srcC): n = max(n, big)
        else:
            if p.W & (c.R | c.W): n = max(n, big)
            if c.is_valu and (p.srcC & c.W): n = max(n, 7 if p.passes == 8 else 3)
    if p.is_salu and (p.W & regs_of('m0')) and c.lds_dma: n = max(n, 1)
    if p.store_data and (p.store_data & c.W): n = max(n, 2)
    return n

def hazard_pass(lines):
    out = []
    hist = []
    for l in lines:
        t = l.strip()
        if not t or t.startswith(';') or t.startswith('.') or t.endswith(':'):
            out.append(l)
            continue
        c = Ins(t)
        req = 0
        dist = 0
        for p in reversed(hist):
            r = need(p, c) - dist
            if r > req: req = r
            dist += p.states
            if dist >= 12: break
        if req > 0:
            nop = Ins(f's_nop {req-1}')
            out.append(f'    s_nop {req-1}')
            hist.append(nop)
        out.append(l)
        hist.append(c)
        if len(hist) > 24: hist = hist[-24:]
        if c.base in ('s_branch', 's_endpgm'): hist = []
    return out

class Kernel:
    def __init__(self, name, grid, block, lds=0, vgpr=256, sgpr=102, accum=None):
        self.name = name; self.grid = grid; self.block = block; self.lds = lds
        self.vgpr = vgpr; self.sgpr = sgpr; self.accum = accum
        self.lines = []
        self.nlab = 0
    def __call__(self, s=''):
        for l in s.split('\n'):
            l = l.strip()
            if not l: continue
            if l.endswith(':') or l.startswith('.'):
                self.lines.append(l)
            else:
                self.lines.append('    ' + l)
    def label(self, base='L'):
        self.nlab += 1
        return f'L_{self.name}_{base}{self.nlab}'
    def srd(self, d, base, nbytes, off=0):
        if off:
            self(f's_add_u32 s{d}, s{base}, {off}\ns_addc_u32 s{d+1}, s{base+1}, 0')
        else:
            self(f's_mov_b32 s{d}, s{base}\ns_mov_b32 s{d+1}, s{base+1}')
        self(f's_mov_b32 s{d+2}, {nbytes}\ns_mov_b32 s{d+3}, 0x20000')
    diag = False
    def stamp(self, i):
        if self.diag and i == 0: self('s_memrealtime s[94:95]')
        ins = 's_memrealtime' if self.diag == 'rt' else 's_memtime'
        if self.diag: self(f's_waitcnt lgkmcnt(0)\n{ins} s[{70+2*i}:{71+2*i}]\ns_waitcnt lgkmcnt(0)')
    marks = ()
    def mark(self, name):
        if self.diag and name in self.marks: self.stamp(1 + self.marks.index(name))
    def dump_stamps(self, n, area, wave_sgpr=3, wpb=8):
        if not self.diag: return
        self('s_waitcnt vmcnt(0)')
        self.stamp(n - 1)
        self('s_memrealtime s[96:97]\ns_waitcnt lgkmcnt(0)')
        self(f's_load_dwordx2 s[64:65], s[0:1], 136\ns_mov_b64 exec, 1\ns_mul_i32 s68, s2, {wpb}\ns_add_u32 s68, s68, s{wave_sgpr}\ns_lshl_b32 s68, s68, 6\ns_waitcnt lgkmcnt(0)')
        self(f's_add_u32 s64, s64, {area}\ns_addc_u32 s65, s65, 0\ns_mov_b32 s66, 0x1000000\ns_mov_b32 s67, 0x20000\nv_mov_b32 v1, 0')
        for i in range(n):
            if i: self(f's_sub_u32 s{70+2*i}, s{70+2*i}, s70')
            self(f'v_mov_b32 v0, s{70+2*i}\nbuffer_store_dword v0, v1, s[64:67], s68 offen offset:{4*i}')
        self('v_mov_b32 v0, s94\nbuffer_store_dword v0, v1, s[64:67], s68 offen offset:48\nv_mov_b32 v0, s96\nbuffer_store_dword v0, v1, s[64:67], s68 offen offset:52')
        self('s_getreg_b32 s69, hwreg(HW_REG_HW_ID)\nv_mov_b32 v0, s69\nbuffer_store_dword v0, v1, s[64:67], s68 offen offset:60')
        self('s_getreg_b32 s69, hwreg(HW_REG_XCC_ID)\nv_mov_b32 v0, s69\nbuffer_store_dword v0, v1, s[64:67], s68 offen offset:56')
    def text(self):
        o = [f'.globl {self.name}', '.p2align 8', f'.type {self.name},@function', f'{self.name}:']
        o += hazard_pass(self.lines)
        return '\n'.join(o)
    def desc(self):
        acc = self.accum if self.accum is not None else min(256, (self.vgpr + 3) // 4 * 4)
        return f'''.p2align 6
.amdhsa_kernel {self.name}
  .amdhsa_next_free_vgpr {self.vgpr}
  .amdhsa_next_free_sgpr {self.sgpr}
  .amdhsa_accum_offset {acc}
  .amdhsa_group_segment_fixed_size 0
  .amdhsa_kernarg_size 144
  .amdhsa_user_sgpr_count 2
  .amdhsa_user_sgpr_kernarg_segment_ptr 1
  .amdhsa_system_sgpr_workgroup_id_x 1
  .amdhsa_float_denorm_mode_32 3
  .amdhsa_float_denorm_mode_16_64 3
.end_amdhsa_kernel'''

def emit(kernels, order=None, path=None):
    order = order or kernels
    o = [HEADER.rstrip('\n')]
    for k in order:
        o.append(f'; @launch kernel={k.name} grid=({k.grid},1,1) block=({k.block},1,1) lds={k.lds}')
    o.append('.amdgcn_target "amdgcn-amd-amdhsa--gfx950"')
    o.append('.text')
    for k in kernels:
        o.append(k.text())
    o.append('.section .rodata,"a"')
    for k in kernels:
        o.append(k.desc())
    s_ = '\n'.join(o) + '\n'
    if path: open(path, 'w').write(s_)
    return s_
```

```python
from asmgen import *
from layout import *
from sched import mfma_stream
from k1 import cmul
import k34

SC = 'sc1'
UVS = 544
UVCH = 64 * UVS
KT = 2 * UVCH; KTCH = 7680
KC = 85248; KCS = 4160; KCH = 4 * KCS
HB = KC + 2 * KCH; HCH = 4608
XS = HB + 2 * HCH
WT = XS + 8192
WDT = WT + 16384
MODS = WDT + 7168
LNT = KC; LNS = 2048 + 64
MRED = LNT + 8 * LNS
EX = 0
LDS_BYTES = 163840
assert MODS + 256 <= LDS_BYTES and MRED + 2048 <= HB
S1F = FLG + 0x1000; S2F = FLG + 0x2000; SWF = FLG + 0x4000
MIMIC_X1 = True

def poll_all(k, name, flag_off, vtag, vaddr, tmp, sleep):
    k(f'''v_lshlrev_b32 v{vaddr}, 4, v2
    v_add_u32 v{vaddr}, {flag_off}, v{vaddr}
    s_mov_b32 s61, 0x40000
    L_{name}_poll:
    global_load_dwordx4 v[{tmp}:{tmp+3}], v{vaddr}, s[4:5] {SC}
    s_waitcnt vmcnt(0)
    v_xor_b32 v{tmp}, v{vtag}, v{tmp}
    v_xor_b32 v{tmp+1}, v{vtag}, v{tmp+1}
    v_xor_b32 v{tmp+2}, v{vtag}, v{tmp+2}
    v_xor_b32 v{tmp+3}, v{vtag}, v{tmp+3}
    v_or3_b32 v{tmp}, v{tmp}, v{tmp+1}, v{tmp+2}
    v_or_b32 v{tmp}, v{tmp}, v{tmp+3}
    v_cmp_ne_u32 vcc, 0, v{tmp}
    s_cbranch_vccz L_{name}_ok
    s_sleep {sleep}
    s_sub_u32 s61, s61, 1
    s_cbranch_scc0 L_{name}_poll
    L_{name}_ok:''')

def signal(k, flag_off_sgpr, vtag, tmp):
    k(f'''v_mov_b32 v{tmp}, s{flag_off_sgpr}
    s_mov_b64 exec, 1
    global_store_dword v{tmp}, v{vtag}, s[4:5] {SC}
    s_mov_b64 exec, -1''')

DEF_MARKS = ('b1', 'b3', 's1', 'hbar', 'p2end', 's2', 'bar0', 't1', 's3')
def build(diag=False, opts=(), marks=DEF_MARKS):
    k = Kernel('fused_kernel', 256, 512, LDS_BYTES, vgpr=256, sgpr=100 if diag else 64)
    k.diag = diag; k.marks = marks
    if diag:
        for i in range(72, 92): k(f's_mov_b32 s{i}, 0')
    k.stamp(0)
    pU, pAre, pLdt = 16, 18, 30
    pDsk, pWg, pWu, pWd, pC, pWm, pOut = 32, 36, 38, 40, 42, 44, 46
    XR = 16; WM = 20; CV = 28; P = 30
    TAG = 15
    k(f'''
    s_cmp_ge_u32 s2, 256
    s_cbranch_scc1 L_end
    s_load_dwordx16 s[16:31], s[0:1], 0
    s_load_dwordx16 s[32:47], s[0:1], 64
    s_load_dwordx2 s[4:5], s[0:1], {KA['ws']}
    v_lshrrev_b32 v1, 6, v0
    v_and_b32 v2, 63, v0
    v_readfirstlane_b32 s3, v1
    v_lshlrev_b32 v12, 4, v2
    s_and_b32 s48, s2, 7
    s_lshl_b32 s48, s48, 5
    s_lshr_b32 s49, s2, 3
    s_add_u32 s48, s48, s49
    s_lshl_b32 s48, s48, 1
    s_lshr_b32 s49, s3, 2
    s_add_u32 s48, s48, s49
    s_lshl_b32 s50, s2, 3
    s_add_u32 s50, s50, s3
    s_lshl_b32 s50, s50, 10
    v_add_u32 v5, s50, v12
    s_min_u32 s51, s2, 191
    s_and_b32 s52, s51, 3
    s_lshr_b32 s53, s51, 2
    s_lshl_b32 s54, s52, 7
    s_lshl_b32 s55, s3, 4
    s_add_u32 s54, s54, s55
    v_lshrrev_b32 v3, 3, v2
    v_add_u32 v3, s54, v3
    v_and_b32 v4, 7, v2
    v_mul_u32_u24 v6, 6144, v3
    v_lshl_add_u32 v6, v4, 4, v6
    s_lshl_b32 s54, s53, 7
    v_add_u32 v6, s54, v6
    v_add_u32 v7, {8*6144}, v6
    v_lshlrev_b32 v8, 1, v3
    v_and_b32 v9, 127, v0
    s_lshl_b32 s54, s48, 8
    v_lshl_add_u32 v10, v9, 1, s54
    s_lshl_b32 s54, s48, 1
    v_mov_b32 v11, s54''')
    for i in range(9): k(f'v_mov_b32 v{CV+i}, 0')
    k('s_waitcnt lgkmcnt(0)')
    k.mark('karg')
    k(f'''global_load_dwordx4 {v(XR,4)}, v5, s[{pU}:{pU+1}]
    global_load_short_d16_hi v{CV}, v8, s[{pC}:{pC+1}]
    global_load_short_d16_hi v{CV+1}, v8, s[{pC}:{pC+1}] offset:16
    global_load_dwordx4 {v(WM,4)}, v6, s[{pWm}:{pWm+1}]
    global_load_dwordx4 {v(WM+4,4)}, v7, s[{pWm}:{pWm+1}]''')
    for i in range(6): k(f'global_load_short_d16_hi v{P+i}, v10, s[{pAre+2*i}:{pAre+2*i+1}]')
    k(f'''global_load_short_d16_hi v{P+6}, v11, s[{pLdt}:{pLdt+1}]
    s_add_u32 s62, s4, {FLG}
    s_addc_u32 s63, s5, 0
    s_load_dword s60, s[62:63], 0
    s_and_b32 s54, s48, -2
    s_lshl_b32 s54, s54, 1
    s_load_dword s59, s[{pDsk}:{pDsk+1}], s54
    s_mov_b64 s[6:7], s[{pOut}:{pOut+1}]
    v_mov_b32 v1, 0xffff0000
    v_mov_b32 v14, 0x3f803f80''')
    GA = 40
    SAD = 52
    k(f'''v_and_b32 v13, 255, v0
    v_lshlrev_b32 v56, 3, v13
    v_sub_u32 v56, 2047, v56''')
    for e in range(12):
        k(f'v_subrev_u32 v{GA+e}, {e}, v56\nv_max_i32 v{GA+e}, 0, v{GA+e}\nv_cvt_f32_u32 v{GA+e}, v{GA+e}')
    for e in range(0, 12, 2):
        k(f'v_cvt_pk_bf16_f32 v57, v{GA+e}, v{GA+e+1}\nv_lshlrev_b32 v{GA+e}, 16, v57\nv_and_b32 v{GA+e+1}, v1, v57')
    k(f's_mul_i32 s54, s49, {KTCH}\ns_add_u32 s54, s54, {KT}')
    for e in range(12):
        k(f'''v_cvt_u32_f32 v{GA+e}, v{GA+e}
        v_lshrrev_b32 v57, 3, v{GA+e}
        v_lshl_add_u32 v{GA+e}, v57, 1, v{GA+e}
        v_lshl_add_u32 v{GA+e}, v{GA+e}, 1, s54''')
    k(f'''v_lshrrev_b32 v4, 4, v2
    v_and_b32 v3, 15, v2
    s_and_b32 s55, s3, 3
    s_cmp_eq_u32 s55, 1
    s_cbranch_scc1 L_sa1
    s_cmp_eq_u32 s55, 2
    s_cbranch_scc1 L_sa2
    v_and_b32 v56, 1, v4
    v_lshrrev_b32 v57, 1, v4
    v_lshlrev_b32 v56, 2, v56
    v_lshl_add_u32 v56, v57, 7, v56''')
    for r in range(4): k(f'v_add_u32 v{SAD+r}, {r}, v56')
    k(f'''s_branch L_sa_done
    L_sa1:
    v_cmp_gt_u32 vcc, 2, v4
    v_lshlrev_b32 v56, 7, v4
    v_add_u32 v56, 256, v56
    v_lshlrev_b32 v57, 8, v4
    v_cndmask_b32 v56, v57, v56, vcc''')
    for r in range(4):
        k(f'v_mov_b32 v57, {4*(r&1) + 128*(r>>1)}\nv_mov_b32 v58, {2*r}\nv_cndmask_b32 v57, v57, v58, vcc\nv_add_u32 v{SAD+r}, v56, v57')
    k(f'''s_branch L_sa_done
    L_sa2:
    v_lshlrev_b32 v56, 9, v4
    v_add_u32 v56, 1024, v56''')
    for r in range(4): k(f'v_add_u32 v{SAD+r}, {128*r}, v56')
    k('L_sa_done:')
    k(f'v_mul_u32_u24 v56, 20, v3\nv_add_u32 v56, s54, v56')
    for r in range(4):
        k(f'''v_lshrrev_b32 v57, 3, v{SAD+r}
        v_lshl_add_u32 v{SAD+r}, v57, 1, v{SAD+r}
        v_lshl_add_u32 v{SAD+r}, v{SAD+r}, 1, v56''')
    k.mark('addr')
    k('s_waitcnt vmcnt(11)')
    k.mark('xin')
    k(f'''
    v_dot2_f32_bf16 v56, v{XR}, v14, 0
    v_dot2_f32_bf16 v57, v{XR}, v{XR}, 0''')
    for j in range(1, 4):
        k(f'v_dot2_f32_bf16 v56, v{XR+j}, v14, v56\nv_dot2_f32_bf16 v57, v{XR+j}, v{XR+j}, v57')
    U = 60
    for j in range(4): k(f'v_lshlrev_b32 v{U+2*j}, 16, v{XR+j}\nv_and_b32 v{U+2*j+1}, v1, v{XR+j}')
    k(f'''v_permlane32_swap_b32 v56, v57
    v_add_f32 v56, v56, v57
    v_mov_b32 v57, v56
    v_permlane16_swap_b32 v56, v57
    v_add_f32 v56, v56, v57''')
    for ror in (8, 4, 2, 1): k(f'v_add_f32_dpp v56, v56, v56 row_ror:{ror} row_mask:0xf bank_mask:0xf')
    k(f'''v_mul_f32 v56, 0x3b000000, v56
    v_mov_b32 v57, v56
    v_permlane32_swap_b32 v56, v57
    v_fma_f32 v57, -v56, v56, v57
    v_max_f32 v57, 0, v57
    v_cvt_pk_bf16_f32 v58, v57, v56
    v_and_b32 v56, v1, v58
    v_lshlrev_b32 v57, 16, v58
    v_add_f32 v57, 0x3727c5ac, v57
    v_cvt_pk_bf16_f32 v58, v57, v57
    v_and_b32 v57, v1, v58
    v_sqrt_f32 v57, v57
    v_cvt_pk_bf16_f32 v58, v57, v57
    v_and_b32 v57, v1, v58
    v_rcp_f32 v57, v57''')
    for e in range(8): k(f'v_sub_f32 v{U+e}, v{U+e}, v56')
    for j in range(4): k(f'v_cvt_pk_bf16_f32 v{68+j}, v{U+2*j}, v{U+2*j+1}')
    for j in range(4): k(f'v_lshlrev_b32 v{U+2*j}, 16, v{68+j}\nv_and_b32 v{U+2*j+1}, v1, v{68+j}')
    for e in range(8): k(f'v_mul_f32 v{U+e}, v{U+e}, v57')
    for j in range(4): k(f'v_cvt_pk_bf16_f32 v{68+j}, v{U+2*j}, v{U+2*j+1}')
    k(f's_mov_b32 s54, 0x05040100\ns_mov_b32 s55, 0x07060302\ns_mul_i32 s56, s3, {LNS}\ns_add_u32 s56, s56, {LNT}\nv_lshl_add_u32 v5, v2, 5, s56')
    for j in range(4):
        k(f'v_perm_b32 v{U+2*j}, v{XR+j}, v{68+j}, s54\nv_perm_b32 v{U+2*j+1}, v{XR+j}, v{68+j}, s55')
    k(f'ds_write_b128 v5, {v(U,4)}\nds_write_b128 v5, {v(U+4,4)} offset:16')
    k.mark('ln')
    A = 72
    k(f's_mov_b32 s54, 0xbfb8aa3b\ns_waitcnt vmcnt(9)')
    for i in range(2): k(f'v_mul_f32 v{56+i}, s54, v{CV+i}')
    for i in range(2): k(f'v_exp_f32 v{56+i}, v{56+i}')
    for i in range(2): k(f'v_add_f32 v{56+i}, 1.0, v{56+i}')
    for i in range(2): k(f'v_rcp_f32 v{56+i}, v{56+i}')
    for i in range(2): k(f'v_mul_f32 v{56+i}, v{56+i}, v{CV+i}')
    k(f'v_cvt_pk_bf16_f32 v58, v56, v57\nv_lshlrev_b32 v{CV}, 16, v58\nv_and_b32 v{CV+1}, v1, v58')
    for i in range(2):
        k(f's_waitcnt vmcnt({8-i})')
        if i == 1: k.mark('wmin')
        for j in range(4): k(f'v_lshlrev_b32 v{U+2*j}, 16, v{WM+4*i+j}\nv_and_b32 v{U+2*j+1}, v1, v{WM+4*i+j}')
        for e in range(8):
            k(f'v_mul_f32 v{A+e}, v{U+e}, v{CV}' if i == 0 else f'v_fmac_f32 v{A+e}, v{U+e}, v{CV+1}')
    for j in range(4): k(f'v_permlane32_swap_b32 v{A+j}, v{A+j+4}')
    for j in range(4): k(f'v_add_f32 v{A+j}, v{A+j}, v{A+j+4}')
    for j in range(2): k(f'v_permlane16_swap_b32 v{A+j}, v{A+j+2}')
    for j in range(2): k(f'v_add_f32 v{A+j}, v{A+j}, v{A+j+2}')
    for j in range(2): k(f'v_add_f32_dpp v{A+j}, v{A+j}, v{A+j} row_ror:8 row_mask:0xf bank_mask:0xf')
    k(f'''v_and_b32 v56, 7, v2
    v_lshlrev_b32 v56, 5, v56
    v_lshl_add_u32 v56, v4, 3, v56
    s_lshl_b32 s54, s3, 8
    s_add_u32 s54, s54, {MRED}
    v_add_u32 v56, s54, v56
    ds_write_b64 v56, v[{A}:{A+1}]
    s_waitcnt vmcnt(0)''')
    k.mark('modd')
    k(f'''s_cmp_lt_u32 s3, 4
    s_cbranch_scc1 L_b1''')
    RW = 80
    k(f'''s_lshr_b32 s54, s2, 4
    s_and_b32 s55, s2, 15
    s_mul_i32 s56, s55, {32*3584}
    s_mul_i32 s57, s54, 224
    s_add_u32 s56, s56, s57
    s_lshr_b32 s57, s2, 3
    s_mul_i32 s57, s57, {56*1024}
    s_and_b32 s58, s2, 7
    s_lshl_b32 s58, s58, 7
    s_add_u32 s57, s57, s58''')
    for rd in range(2):
        k(f'''v_add_u32 v56, {256*rd}, v13
        v_min_u32 v56, 447, v56
        v_mul_u32_u24 v57, 4682, v56
        v_lshrrev_b32 v57, 16, v57
        v_mul_u32_u24 v58, 14, v57
        v_sub_u32 v58, v56, v58
        v_mul_u32_u24 v59, 3584, v57
        v_lshl_add_u32 v59, v58, 4, v59
        v_add_u32 v59, s56, v59
        global_load_dwordx4 {v(RW+8*rd,4)}, v59, s[{pWg}:{pWg+1}]
        global_load_dwordx4 {v(RW+8*rd+4,4)}, v59, s[{pWu}:{pWu+1}]
        v_and_b32 v59, 3, v57
        v_bfe_u32 v60, v57, 3, 1
        v_lshl_or_b32 v59, v60, 2, v59
        v_xor_b32 v58, v58, v59
        v_lshlrev_b32 v58, 5, v58
        v_lshl_add_u32 v58, v57, 9, v58
        v_add_u32 v{104+rd}, {WT}, v58
        v_lshrrev_b32 v57, 3, v56
        v_and_b32 v58, 7, v56
        v_lshlrev_b32 v59, 10, v57
        v_lshl_add_u32 v59, v58, 4, v59
        v_add_u32 v59, s57, v59
        global_load_dwordx4 {v(96+4*rd,4)}, v59, s[{pWd}:{pWd+1}]
        v_lshlrev_b32 v56, 4, v56
        v_add_u32 v{106+rd}, {WDT}, v56''')
    for j in range(448): assert (j * 4682) >> 16 == j // 14
    if 'nocodepf' not in opts:
        k(f'''s_getpc_b64 s[54:55]
        v_lshlrev_b32 v56, 7, v13
        global_load_dword v127, v56, s[54:55]''')
    k(f'''L_b1:
    s_waitcnt lgkmcnt(0)
    s_barrier''')
    k.mark('b1')
    k(f'''v_mov_b32 v{TAG}, s60
    v_add_u32 v{TAG}, 1, v{TAG}
    s_add_u32 s60, s60, 1
    s_cmp_ge_u32 s3, 4
    s_cbranch_scc1 L_kgen''')
    k(f'''v_bfe_u32 v56, v2, 2, 2
    v_mul_u32_u24 v56, {LNS}, v56
    v_and_b32 v57, 3, v2
    v_lshl_add_u32 v56, v57, 3, v56
    v_lshl_add_u32 v56, v4, 5, v56
    s_lshl_b32 s54, s3, 9
    s_add_u32 s54, s54, {LNT}
    v_add_u32 v56, s54, v56
    v_lshlrev_b32 v57, 2, v2
    v_add_u32 v58, {MRED}, v57''')
    for q in range(4):
        k(f'ds_read_b64_tr_b16 v[{60+4*q}:{61+4*q}], v56 offset:{128*q}\nds_read_b64_tr_b16 v[{62+4*q}:{63+4*q}], v56 offset:{128*q + 4*LNS}')
    for w in range(8): k(f'ds_read_b32 v{76+w}, v58 offset:{256*w}')
    k(f'''s_lshl_b32 s54, s2, 14
    s_lshl_b32 s55, s3, 12
    s_add_u32 s54, s54, s55
    s_add_u32 s54, s54, {ZX}
    v_add_u32 v59, s54, v12''')
    for q in range(4):
        k(f's_waitcnt lgkmcnt({14-2*q})\nglobal_store_dwordx4 v59, {v(60+4*q,4)}, s[4:5] offset:{1024*q} {SC}')
    k(f'''s_cmp_lg_u32 s3, 0
    s_cbranch_scc1 L_kgen
    s_mul_i32 s54, s52, {3072*4}
    s_lshl_b32 s55, s53, 8
    s_add_u32 s54, s54, s55
    s_add_u32 s54, s54, {MODP}
    v_add_u32 v57, s54, v57
    s_waitcnt lgkmcnt(0)''')
    for st, n in ((1, 8), (2, 8), (4, 8)):
        for j in range(0, 8, 2*st): k(f'v_add_f32 v{76+j}, v{76+j}, v{76+j+st}')
    k(f'global_store_dword v57, v76, s[4:5] {SC}')
    CB = 56; TMP = 58
    k(f'''L_kgen:
    s_mul_i32 s54, s49, {UVCH}
    v_lshl_add_u32 v9, v9, 2, s54
    v_mad_u32_u24 v11, v3, {UVS // 16}, v4
    v_lshl_add_u32 v11, v11, 4, s54
    s_mov_b32 s54, {LOG2E}
    s_mov_b32 s55, {INV2PI}
    v_mul_f32 v{P+6}, s54, v{P+6}
    v_exp_f32 v{P+6}, v{P+6}
    v_cvt_pk_bf16_f32 v{P+6}, v{P+6}, v{P+6}
    v_and_b32 v{P+6}, v1, v{P+6}
    v_mul_f32 v{P}, v{P}, v{P+6}
    v_mul_f32 v{P+1}, v{P+1}, v{P+6}
    v_mul_f32 v{P+2}, v{P+2}, v{P+6}
    v_mul_f32 v{P+3}, v{P+3}, v{P+6}
    v_mul_f32 v{P}, s54, v{P}
    v_mul_f32 v{P+1}, s55, v{P+1}''')
    cmul(k, CB, CB+1, P+4, P+5, P+2, P+3, TMP)
    def direct(dst, l):
        lf = {1: '1.0', 4: '4.0', 8: '0x41000000', 128: '0x43000000', 512: '0x44000000'}[l]
        k(f'''v_mul_f32 v{TMP}, {lf}, v{P}
        v_mul_f32 v{TMP+1}, {lf}, v{P+1}
        v_exp_f32 v{TMP}, v{TMP}
        v_fract_f32 v{TMP+1}, v{TMP+1}
        v_cos_f32 v{dst}, v{TMP+1}
        v_sin_f32 v{dst+1}, v{TMP+1}
        v_mul_f32 v{dst}, v{dst}, v{TMP}
        v_mul_f32 v{dst+1}, v{dst+1}, v{TMP}''')
    cnt = [0]
    def put(row, zr, neg=False):
        t = 62 + (cnt[0] % 4); cnt[0] += 1
        k(f'v_cvt_pk_bf16_f32 v{t}, v{zr}, {"-" if neg else ""}v{zr+1}\nds_write_b32 v9, v{t} offset:{row*UVS}')
    k(f's_bitcmp1_b32 s3, 1\ns_cbranch_scc1 L_halfB')
    E = 108; E128 = 66; Tk = 68; Z = 76
    def e(r): return E + 2*r
    direct(e(1), 1); direct(E128, 128)
    cmul(k, e(2), e(2)+1, e(1), e(1)+1, e(1), e(1)+1, TMP)
    cmul(k, Tk+2, Tk+3, CB, CB+1, E128, E128+1, TMP+2)
    cmul(k, e(3), e(3)+1, e(2), e(2)+1, e(1), e(1)+1, TMP)
    cmul(k, e(4), e(4)+1, e(2), e(2)+1, e(2), e(2)+1, TMP+2)
    cmul(k, Tk+4, Tk+5, Tk+2, Tk+3, E128, E128+1, TMP)
    cmul(k, e(5), e(5)+1, e(4), e(4)+1, e(1), e(1)+1, TMP+2)
    cmul(k, e(6), e(6)+1, e(4), e(4)+1, e(2), e(2)+1, TMP)
    cmul(k, e(7), e(7)+1, e(4), e(4)+1, e(3), e(3)+1, TMP+2)
    cmul(k, Tk+6, Tk+7, Tk+4, Tk+5, E128, E128+1, TMP)
    tk = [CB, Tk+2, Tk+4, Tk+6]
    rows = [(0, r) for r in range(8)] + [(1, r) for r in range(8)] + [(2, r) for r in (0,2,4,6)] + [(3, r) for r in (0,2,4,6)]
    for i, (kap, rho) in enumerate(rows):
        if rho == 0: put(i, tk[kap])
        else:
            z = Z + 2*(i % 2)
            cmul(k, z, z+1, tk[kap], tk[kap]+1, e(rho), e(rho)+1, TMP + 2*(i % 2))
            put(i, z)
    k('s_branch L_uv_done\nL_halfB:')
    E4 = 110; E8 = 112; E512 = 114; VA = 116; TA = 120
    direct(E8, 8); direct(E128, 128); direct(E512, 512); direct(E4, 4)
    k(f'v_mov_b32 v{VA}, 1.0\nv_mov_b32 v{VA+1}, 0')
    put(48, VA, True); put(49, E8, True)
    cmul(k, TA, TA+1, CB, CB+1, E512, E512+1, TMP)
    vprev = E8; tprev = TA
    for i in range(14):
        vn = VA + 2*(i % 2)
        cmul(k, vn, vn+1, vprev, vprev+1, E8, E8+1, TMP)
        put(50+i, vn, True); vprev = vn
        kap = 4 + i
        if kap <= 16:
            if kap < 8:
                put(24 + 2*(kap-4), tprev)
                cmul(k, Z, Z+1, tprev, tprev+1, E4, E4+1, TMP+2)
                put(25 + 2*(kap-4), Z)
            else:
                put(32 + kap - 8, tprev)
            if kap < 16:
                tn = TA + 2*((i+1) % 2)
                cmul(k, tn, tn+1, tprev, tprev+1, E128, E128+1, TMP+2)
                tprev = tn
    FK = 128
    k('L_uv_done:')
    k.mark('uv')
    k(f'''
    s_cmp_ge_u32 s3, 4
    s_cbranch_scc1 L_b2
    s_waitcnt vmcnt(0)
    L_b2:
    s_waitcnt lgkmcnt(0)
    s_barrier''')
    k.mark('b2')
    k(f'''s_and_b32 s55, s3, 3
    s_cmp_eq_u32 s55, 3
    s_cbranch_scc0 L_kmm
    s_cmp_lg_u32 s3, 3
    s_cbranch_scc1 L_b3
    s_lshl_b32 s54, s2, 2
    s_add_u32 s54, s54, {S1F}''')
    signal(k, 54, TAG, 56)
    k(f'''s_branch L_b3
    L_kmm:
    s_mul_i32 s54, s55, {16*UVS}
    v_add_u32 v56, s54, v11''')
    for st in range(8):
        k(f'ds_read_b128 {v(FK+8*st,4)}, v56 offset:{64*st}\nds_read_b128 {v(FK+8*st+4,4)}, v11 offset:{48*UVS + 64*st}')
    for st in range(8):
        k(f's_waitcnt lgkmcnt({14-2*st})')
        k(f'v_mfma_f32_16x16x32_bf16 v[60:63], {v(FK+8*st,4)}, {v(FK+8*st+4,4)}, {"0" if st == 0 else "v[60:63]"}')
    k(f'''v_cvt_pk_bf16_f32 v64, v60, v61
    v_cvt_pk_bf16_f32 v65, v62, v63
    ds_write_b16 v{SAD}, v64
    ds_write_b16_d16_hi v{SAD+1}, v64
    ds_write_b16 v{SAD+2}, v65
    ds_write_b16_d16_hi v{SAD+3}, v65
    L_b3:
    s_waitcnt lgkmcnt(0)
    s_barrier''')
    k.mark('b3')
    D = 56
    for j in range(6): k(f'v_mov_b32 v{D+6+j}, 0')
    for j in range(6): k(f'ds_read_u16 v{D+j}, v{GA+2*j}\nds_read_u16_d16_hi v{D+6+j}, v{GA+2*j+1}')
    k(f'''s_mul_i32 s52, s49, {KCH}
    s_add_u32 s52, s52, {KC}
    s_mul_i32 s53, s49, {HCH}
    s_add_u32 s53, s53, {HB}
    s_and_b32 s54, s3, 3
    s_mul_i32 s54, s54, {KCS}
    s_add_u32 s54, s54, s52
    s_add_u32 s54, s54, 4096
    v_and_b32 v5, 1, v2
    v_lshl_add_u32 v5, v5, 4, s54
    v_add_u32 v6, s53, v12
    v_cmp_gt_u32 vcc, 32, v2
    v_mov_b32 v16, 0
    v_mov_b32 v17, 0
    v_mov_b32 v18, 0
    v_mov_b32 v19, 0
    v_cndmask_b32 v5, v5, v6, vcc
    ds_write_b128 v5, v[16:19]
    v_lshl_add_u32 v5, v13, 4, s52
    v_cmp_eq_u32 vcc, 255, v13
    s_waitcnt lgkmcnt(1)''')
    for j in range(6): k(f'v_or_b32 v{D+j}, v{D+j}, v{D+6+j}')
    k(f'v_cndmask_b32 v{D+4}, v{D+4}, 0, vcc\nv_cndmask_b32 v{D+5}, v{D+5}, 0, vcc')
    k(f'ds_write_b128 v5, {v(D,4)}')
    for j in range(4): k(f'v_alignbit_b32 v{68+j}, v{D+j+1}, v{D+j}, 16')
    k(f'ds_write_b128 v5, v[68:71] offset:{KCS}')
    for j in range(4): k(f'v_mov_b32 v{72+j}, v{D+j+1}')
    k(f'ds_write_b128 v5, v[72:75] offset:{2*KCS}')
    for j in range(4): k(f'v_alignbit_b32 v{76+j}, v{D+j+2}, v{D+j+1}, 16')
    k(f'ds_write_b128 v5, v[76:79] offset:{3*KCS}')
    k.mark('kc')
    k(f's_cmp_lt_u32 s3, 4\ns_cbranch_scc1 L_b4\ns_waitcnt vmcnt(0)')
    for rd in range(2):
        for j in range(4):
            k(f'ds_write2_b32 v{104+rd}, v{RW+8*rd+j}, v{RW+8*rd+4+j} offset0:{2*j} offset1:{2*j+1}')
        k(f'ds_write_b128 v{106+rd}, {v(96+4*rd,4)}')
    FRW = 80
    k('L_b4:\ns_waitcnt lgkmcnt(0)\ns_barrier')
    k.mark('b4')
    k(f'''
    s_min_u32 s54, s3, 6
    s_lshl_b32 s54, s54, 1
    v_bfe_u32 v56, v2, 2, 2
    v_and_b32 v57, 1, v4
    v_lshl_or_b32 v57, v57, 2, v56
    v_xor_b32 v57, s54, v57
    v_lshlrev_b32 v57, 5, v57
    v_lshl_add_u32 v56, v4, 3, v56
    v_lshl_add_u32 v56, v56, 9, v57
    v_and_b32 v57, 3, v2
    v_lshl_add_u32 v56, v57, 3, v56
    v_add_u32 v56, {WT}, v56
    v_xor_b32 v58, 32, v56
    ds_read_b64_tr_b16 v[{FRW}:{FRW+1}], v56
    ds_read_b64_tr_b16 v[{FRW+2}:{FRW+3}], v56 offset:2048
    ds_read_b64_tr_b16 v[{FRW+4}:{FRW+5}], v58
    ds_read_b64_tr_b16 v[{FRW+6}:{FRW+7}], v58 offset:2048
    v_bfe_u32 v58, v2, 3, 1
    v_bfe_u32 v59, v2, 2, 1
    v_lshl_add_u32 v59, v4, 1, v59
    v_lshl_add_u32 v58, v58, 3, v59
    v_lshlrev_b32 v57, 4, v57
    s_lshr_b32 s54, s3, 2
    s_lshl_b32 s54, s54, 6
    s_bfe_u32 s55, s3, 0x10001
    s_lshl_b32 s55, s55, 3
    s_add_u32 s54, s54, s55
    s_add_u32 s54, s54, {WDT}
    v_add_u32 v57, s54, v57
    v_lshl_add_u32 v58, v58, 7, v57
    v_lshl_add_u32 v59, v59, 7, v57
    s_and_b32 s54, s2, 7
    s_lshl_b32 s54, s54, 2
    s_lshr_b32 s55, s3, 1
    s_add_u32 s54, s54, s55
    s_lshl_b32 s54, s54, 5
    s_lshr_b32 s55, s2, 3
    s_add_u32 s54, s54, s55
    s_mul_i32 s54, s54, {k34.UB}
    s_add_u32 s54, s54, {WD}
    s_bitcmp1_b32 s3, 0
    s_cbranch_scc1 L_wd3
    ds_read_b64_tr_b16 v[60:61], v58
    ds_read_b64_tr_b16 v[62:63], v58 offset:2048
    v_add_u32 v57, s54, v12
    s_waitcnt lgkmcnt(0)
    global_store_dwordx4 v57, v[60:63], s[4:5] {SC}
    s_branch L_wd_done
    L_wd3:
    ds_read_b64_tr_b16 v[60:61], v58 offset:4096
    ds_read_b64_tr_b16 v[62:63], v59 offset:6144
    v_mul_u32_u24 v57, 12, v2
    v_add_u32 v57, s54, v57
    s_waitcnt lgkmcnt(0)
    global_store_dwordx3 v57, v[60:62], s[4:5] offset:1024 {SC}
    L_wd_done:''')
    k(f'''s_and_b32 s54, s3, 3
    s_lshl_b32 s54, s54, 2
    s_lshr_b32 s56, 0x3517, s54
    s_and_b32 s56, s56, 15
    v_add_u32 v8, 1, v4
    v_and_b32 v8, 3, v8
    v_lshlrev_b32 v8, 3, v8
    v_lshl_add_u32 v8, v3, 5, v8
    s_lshl_b32 s56, s56, 9
    s_sub_u32 s56, s56, 512
    v_add_u32 v8, s56, v8
    s_and_b32 s57, s3, 1
    s_lshl_b32 s57, s57, 8
    s_add_u32 s58, s53, 512
    v_lshl_add_u32 v10, v13, 4, s58
    v_add_u32 v7, s58, v8
    v_add_u32 v11, 4, v3
    v_and_b32 v11, 15, v11
    v_sub_u32 v11, 2031, v11
    v_lshl_add_u32 v11, v4, 3, v11
    v_and_b32 v9, 3, v11
    v_lshrrev_b32 v11, 2, v11
    v_lshlrev_b32 v11, 3, v11
    v_mul_u32_u24 v9, {KCS}, v9
    v_add_u32 v11, v11, v9
    s_sub_u32 s54, s52, s57
    s_sub_u32 s54, s54, 3776
    v_add_u32 v11, s54, v11
    v_lshlrev_b32 v9, 4, v4
    v_lshl_add_u32 v9, v3, 5, v9
    s_sub_u32 s54, s53, s57
    s_add_u32 s54, s54, 288
    v_add_u32 v9, s54, v9
    s_lshl_b32 s54, s3, 11
    v_add_u32 v14, s54, v12
    v_lshlrev_b32 v6, 14, v13
    s_lshl_b32 s54, s48, 5
    s_add_u32 s54, s54, {ZX}
    v_add_u32 v6, s54, v6
    v_and_b32 v20, 3, v2
    v_mul_u32_u24 v20, {3072*4}, v20
    v_lshrrev_b32 v21, 2, v3
    v_lshl_add_u32 v20, v21, 11, v20
    s_lshl_b32 s54, s48, 2
    s_add_u32 s54, s54, {MODP}
    v_add_u32 v20, s54, v20
    v_lshrrev_b32 v21, 5, v2
    v_lshlrev_b32 v21, 11, v21
    v_and_b32 v22, 31, v2
    v_lshl_add_u32 v21, v22, 2, v21
    s_and_b32 s54, s2, 15
    s_lshl_b32 s54, s54, 7
    s_add_u32 s54, s54, {MODP + 3*2048}
    v_add_u32 v21, s54, v21
    s_waitcnt vmcnt(0)
    s_barrier''')
    k.mark('wdst')
    k(f'''
    s_cmp_lg_u32 s3, 7
    s_cbranch_scc1 L_nosw
    s_and_b32 s54, s2, 7
    s_lshl_b32 s54, s54, 7
    s_lshr_b32 s55, s2, 3
    s_lshl_b32 s55, s55, 2
    s_add_u32 s54, s54, s55
    s_add_u32 s54, s54, {SWF}''')
    signal(k, 54, TAG, 56)
    k('L_nosw:\ns_cmp_lg_u32 s3, 0\ns_cbranch_scc1 L_b5')
    poll_all(k, 's1', S1F, TAG, 56, 60, 8)
    k('L_b5:\ns_barrier')
    k.mark('s1')
    ZR = 24; XQ = 28
    k(f'''global_load_dword v16, v20, s[4:5] {SC}
    global_load_dwordx4 {v(ZR,4)}, v6, s[4:5] {SC}
    global_load_dwordx4 {v(XQ,4)}, v6, s[4:5] offset:16 {SC}
    s_cmp_lg_u32 s3, 7
    s_cbranch_scc1 L_nomods''')
    for q in range(4):
        k(f'global_load_dword v{32+q}, v21, s[4:5] {SC}\nv_add_u32 v21, {3072*4}, v21')
    k(f'''v_lshlrev_b32 v23, 1, v22
    v_add_u32 v23, {MODS + 128}, v23
    v_lshlrev_b32 v22, 2, v22
    v_add_u32 v22, {MODS}, v22
    s_waitcnt vmcnt(0)
    v_add_f32 v32, v32, v33
    v_add_f32 v34, v34, v35
    v_add_f32 v32, v32, v34
    v_cvt_pk_bf16_f32 v33, v32, v32
    v_and_b32 v32, v1, v33
    v_add_f32 v32, 1.0, v32
    v_cvt_pk_bf16_f32 v32, v32, v32
    v_and_b32 v32, v1, v32
    s_mov_b64 exec, 0xffffffff
    ds_write_b16 v23, v33
    s_not_b64 exec, exec
    ds_write_b32 v22, v32
    s_mov_b64 exec, -1
    L_nomods:
    s_lshl_b32 s54, s49, 4
    s_lshr_b32 s59, s59, s54
    s_lshl_b32 s59, s59, 16
    v_mov_b32 v55, s59
    s_mul_i32 s54, s49, 4096
    s_add_u32 s54, s54, {XS}
    v_lshl_add_u32 v23, v13, 4, s54
    v_add_u32 v13, s54, v8
    s_waitcnt vmcnt(2)
    v_add_f32_dpp v16, v16, v16 quad_perm:[1,0,3,2] row_mask:0xf bank_mask:0xf
    v_add_f32_dpp v16, v16, v16 quad_perm:[2,3,0,1] row_mask:0xf bank_mask:0xf
    v_cvt_pk_bf16_f32 v16, v16, v16
    v_and_b32 v16, v1, v16
    v_add_f32 v17, 1.0, v16
    v_cvt_pk_bf16_f32 v17, v17, v17
    v_and_b32 v17, v1, v17
    v_mov_b32_dpp v52, v16 row_newbcast:0 row_mask:0xf bank_mask:0xf
    v_mov_b32_dpp v53, v17 row_newbcast:4 row_mask:0xf bank_mask:0xf
    v_mov_b32_dpp v54, v16 row_newbcast:8 row_mask:0xf bank_mask:0xf
    s_waitcnt vmcnt(1)''')
    H = 56
    for j in range(4): k(f'v_lshlrev_b32 v{H+2*j}, 16, v{ZR+j}\nv_and_b32 v{H+2*j+1}, v1, v{ZR+j}')
    for e_ in range(8): k(f'v_fma_f32 v{H+e_}, v{H+e_}, v53, v52')
    for j in range(4): k(f'v_cvt_pk_bf16_f32 v{ZR+j}, v{H+2*j}, v{H+2*j+1}')
    k(f'''ds_write_b128 v10, {v(ZR,4)}
    s_waitcnt vmcnt(0)
    ds_write_b128 v23, {v(XQ,4)}
    s_waitcnt lgkmcnt(0)
    s_barrier''')
    k.mark('hbar')
    k(f'''v_lshlrev_b32 v56, 5, v4
    v_add_u32 v56, {MODS}, v56
    v_lshlrev_b32 v57, 4, v4
    v_add_u32 v58, {MODS + 128}, v57
    ds_read_b128 v[60:63], v56
    ds_read_b128 v[64:67], v56 offset:16
    ds_read_b128 v[68:71], v58
    v_mov_b32 v72, 0x3f803f80
    v_mov_b32 v73, v72
    v_mov_b32 v74, v72
    v_mov_b32 v75, v72
    s_min_u32 s54, s3, 6
    s_mul_i32 s55, s2, {14*1024}
    s_lshl_b32 s56, s54, 11
    s_add_u32 s55, s55, s56
    s_add_u32 s55, s55, {WP}
    v_add_u32 v56, s55, v12
    s_and_b32 s55, s2, 15
    s_mul_i32 s55, s55, {224*128}
    s_lshr_b32 s56, s2, 4
    s_mul_i32 s56, s56, {14*128}
    s_add_u32 s55, s55, s56
    s_lshl_b32 s56, s54, 8
    s_add_u32 s55, s55, s56
    s_add_u32 s55, s55, {CSB}
    v_add_u32 v57, s55, v57
    s_waitcnt lgkmcnt(0)
    v_mfma_f32_16x16x32_bf16 v[20:23], {v(FRW,4)}, v[68:71], 0
    v_mfma_f32_16x16x32_bf16 v[28:31], {v(FRW+4,4)}, v[68:71], 0''')
    for j in range(8):
        k(f'''v_lshlrev_b32 v76, 16, v{FRW+j}
        v_and_b32 v77, v1, v{FRW+j}
        v_mul_f32 v76, v76, v{60+2*(j%4)}
        v_mul_f32 v77, v77, v{61+2*(j%4)}
        v_cvt_pk_bf16_f32 v{88+j}, v76, v77''')
    k(f'''global_store_dwordx4 v56, v[88:91], s[4:5] {SC}
    global_store_dwordx4 v56, v[92:95], s[4:5] offset:1024 {SC}
    v_mfma_f32_16x16x32_bf16 v[16:19], v[88:91], v[72:75], 0
    v_mfma_f32_16x16x32_bf16 v[24:27], v[92:95], v[72:75], 0
    s_mov_b32 exec_lo, 0x00010001
    s_mov_b32 exec_hi, 0x00010001
    global_store_dwordx4 v57, v[20:23], s[4:5] offset:64 {SC}
    global_store_dwordx4 v57, v[28:31], s[4:5] offset:192 {SC}
    global_store_dwordx4 v57, v[16:19], s[4:5] {SC}
    global_store_dwordx4 v57, v[24:27], s[4:5] offset:128 {SC}
    s_mov_b64 exec, -1
    s_nop 1''')
    k.mark('prep')
    k(f'''s_bitcmp1_b32 s3, 1
    s_cbranch_scc1 L_set1''')
    ACC = 16
    slots = [32, 36, 40, 44, 48] + [56 + 4*i for i in range(18)]
    def conv_path(blocks):
        mf = []; fl = {}
        qmax = max(blocks)
        for m0 in (0, 2, 4, 6):
            for q in range(qmax + 1):
                fl[('A', m0, q)] = (lambda r, m0=m0, q=q: [f'ds_read_b64 v[{r}:{r+1}], v11 offset:{3776 - 32*m0 - 512*q}',
                                                           f'ds_read_b64 v[{r+2}:{r+3}], v11 offset:{3776 - 32*m0 - 512*q + 8}'])
                fl[('B', m0, q)] = (lambda r, m0=m0, q=q: [f'ds_read_b128 v[{r}:{r+3}], v9 offset:{192 - 32*m0 + 512*q}'])
            for q in range(qmax + 1):
                for bi, c in enumerate(blocks):
                    if q <= c: mf.append((ACC + 4*bi, ('A', m0, q), ('B', m0, c - q)))
        mfma_stream(k, mf, fl, slots, per_gap=2, pre=12)
    conv_path([7, 6, 1, 0])
    k('s_branch L_conv_done\nL_set1:')
    conv_path([5, 4, 3, 2])
    XE = 48
    k('L_conv_done:')
    k.mark('conv')
    k(f'''s_nop 7
    ds_read_b64 v[56:57], v7 offset:512
    ds_read_b64 v[58:59], v7
    ds_read_b64 v[{XE}:{XE+1}], v13 offset:512
    ds_read_b64 v[{XE+2}:{XE+3}], v13
    v_xor_b32 v5, 2048, v14
    s_bitcmp1_b32 s3, 0
    s_cbranch_scc1 L_mh1
    ds_write_b128 v14, v[24:27]
    ds_write_b128 v14, v[28:31] offset:1024
    s_branch L_sent
    L_mh1:
    ds_write_b128 v14, v[16:19]
    ds_write_b128 v14, v[20:23] offset:1024''')
    for j in range(8): k(f'v_mov_b32 v{16+j}, v{24+j}')
    HF = 60; XF = 68
    k(f'L_sent:\ns_waitcnt lgkmcnt(2)')
    for j in range(4):
        k(f'v_lshlrev_b32 v{HF+2*j}, 16, v{56+j}\nv_and_b32 v{HF+2*j+1}, v1, v{56+j}')
        k(f'v_lshlrev_b32 v{XF+2*j}, 16, v{XE+j}\nv_and_b32 v{XF+2*j+1}, v1, v{XE+j}')
    def rnd(base):
        for j in range(4): k(f'v_cvt_pk_bf16_f32 v{76+j}, v{base+2*j}, v{base+2*j+1}')
        for j in range(4): k(f'v_lshlrev_b32 v{base+2*j}, 16, v{76+j}\nv_and_b32 v{base+2*j+1}, v1, v{76+j}')
    if MIMIC_X1:
        for e_ in range(8): k(f'v_mul_f32 v{HF+e_}, v{HF+e_}, v55')
        rnd(HF)
    k(f'''s_lshl_b32 s54, s48, 12
    s_add_u32 s54, s54, {X1T}
    v_add_u32 v8, s54, v8
    s_waitcnt lgkmcnt(0)
    s_barrier
    ds_read_b128 v[24:27], v5
    ds_read_b128 v[28:31], v5 offset:1024
    s_waitcnt lgkmcnt(0)''')
    for e_ in range(8): k(f'v_add_f32 v{16+e_}, v{16+e_}, v{24+e_}')
    if MIMIC_X1:
        rnd(16)
        for e_ in range(8): k(f'v_add_f32 v{16+e_}, v{16+e_}, v{HF+e_}')
        rnd(16)
        for e_ in range(8): k(f'v_mul_f32 v{16+e_}, v{16+e_}, v54')
        rnd(16)
        for e_ in range(8): k(f'v_add_f32 v{16+e_}, v{16+e_}, v{XF+e_}')
    else:
        for e_ in range(8): k(f'v_fmac_f32 v{16+e_}, v{HF+e_}, v55')
        for e_ in range(8): k(f'v_fma_f32 v{16+e_}, v{16+e_}, v54, v{XF+e_}')
    for j in range(4): k(f'v_cvt_pk_bf16_f32 v{76+j}, v{16+2*j}, v{17+2*j}')
    k.mark('cepi')
    k(f'''global_store_dwordx2 v8, v[76:77], s[4:5] offset:512 {SC}
    global_store_dwordx2 v8, v[78:79], s[4:5] {SC}
    s_lshl_b32 s54, s2, 2
    s_add_u32 s54, s54, {S2F}
    s_waitcnt vmcnt(0)
    s_barrier
    s_cmp_lg_u32 s3, 1
    s_cbranch_scc1 L_nosig2''')
    signal(k, 54, TAG, 56)
    k('L_nosig2:')
    k.mark('p2end')
    k34.gemm_phases(k, tuple(opts) + ('fused2',), S2F=S2F, SWF=SWF, poll_all=poll_all, signal=signal)
    k.dump_stamps(11, DIAG)
    k('L_end:\ns_endpgm')
    return k
```

```python
from asmgen import *
from layout import *

N_MOD, N_LN, N_KG = 96, 64, 512
UVS = 544
KT = 64 * UVS
K1_LDS = KT + 6272

def cmul(k, zr, zi, xr, xi, yr, yi, t):
    k(f'''v_mul_f32 v{t}, v{xi}, v{yi}
    v_mul_f32 v{t+1}, v{xi}, v{yr}
    v_fma_f32 v{zr}, v{xr}, v{yr}, -v{t}
    v_fma_f32 v{zi}, v{xr}, v{yi}, v{t+1}''')

def build_k1(diag=False):
    k = Kernel('k1_kernel', N_MOD + N_LN + N_KG, 256, K1_LDS, vgpr=128, sgpr=96 if diag else 64)
    k.diag = diag
    k.stamp(0)
    def fin():
        k.dump_stamps(2, DIAG + 0x200000, wpb=4)
    k(f'''
    s_cmp_ge_u32 s2, {N_MOD + N_LN + N_KG}
    s_cbranch_scc1 L_k1_end
    s_load_dwordx2 s[4:5], s[0:1], {KA['ws']}
    v_lshrrev_b32 v1, 6, v0
    v_and_b32 v2, 63, v0
    v_readfirstlane_b32 s3, v1
    s_cmp_ge_u32 s2, {N_MOD + N_LN}
    s_cbranch_scc1 L_k1_kgen
    s_cmp_ge_u32 s2, {N_MOD}
    s_cbranch_scc1 L_k1_ln
    ''')
    D = 16
    C = 48
    A = 56
    k(f'''
    s_load_dwordx2 s[6:7], s[0:1], {KA['wmod']}
    s_load_dwordx2 s[16:17], s[0:1], {KA['c']}
    v_lshrrev_b32 v3, 2, v2
    s_lshl_b32 s18, s3, 7
    v_add_u32 v3, s18, v3
    v_and_b32 v4, 3, v2
    v_mul_u32_u24 v5, 6144, v3
    v_lshl_add_u32 v5, v4, 4, v5
    v_lshlrev_b32 v6, 1, v3
    s_lshl_b32 s19, s2, 6
    ''')
    for i in range(8): k(f'v_mov_b32 v{C+i}, 0\nv_mov_b32 v{A+i}, 0')
    k('s_waitcnt lgkmcnt(0)')
    k.srd(8, 6, 512 * 6144)
    for i in range(8):
        k(f'global_load_short_d16_hi v{C+i}, v6, s[16:17] offset:{32*i}')
    for i in range(8):
        k(f'buffer_load_dwordx4 {v(D+4*i,4)}, v5, s[8:11], s19 offen\ns_add_u32 s19, s19, {16*6144}')
    k.srd(12, 4, 3072 * 4, MODF)
    k.srd(20, 4, 3072 * 2, MODH)
    k(f's_mov_b32 s24, 0xbfb8aa3b\ns_mov_b32 s25, 0xffff0000\nv_mov_b32 v15, s25')
    k('s_waitcnt vmcnt(8)')
    for i in range(8): k(f'v_mul_f32 v{64+i}, s24, v{C+i}')
    for i in range(8): k(f'v_exp_f32 v{64+i}, v{64+i}')
    for i in range(8): k(f'v_add_f32 v{64+i}, 1.0, v{64+i}')
    for i in range(8): k(f'v_rcp_f32 v{64+i}, v{64+i}')
    for i in range(8): k(f'v_mul_f32 v{64+i}, v{64+i}, v{C+i}')
    for i in range(0, 8, 2):
        k(f'v_cvt_pk_bf16_f32 v72, v{64+i}, v{65+i}\nv_lshlrev_b32 v{C+i}, 16, v72\nv_and_b32 v{C+i+1}, v15, v72')
    for i in range(8):
        k(f's_waitcnt vmcnt({7-i})')
        for j in range(4):
            k(f'''v_lshlrev_b32 v{64+2*j}, 16, v{D+4*i+j}
            v_and_b32 v{65+2*j}, v15, v{D+4*i+j}''')
        for j in range(8):
            k(f'v_fmac_f32 v{A+j}, v{64+j}, v{C+i}')
    for j in range(4): k(f'v_permlane32_swap_b32 v{A+j}, v{A+j+4}')
    for j in range(4): k(f'v_add_f32 v{A+j}, v{A+j}, v{A+j+4}')
    for j in range(2): k(f'v_permlane16_swap_b32 v{A+j}, v{A+j+2}')
    for j in range(2): k(f'v_add_f32 v{A+j}, v{A+j}, v{A+j+2}')
    for ror in (8, 4):
        for j in range(2): k(f'v_add_f32_dpp v{A+j}, v{A+j}, v{A+j} row_ror:{ror} row_mask:0xf bank_mask:0xf')
    k(f'''
    v_lshrrev_b32 v7, 4, v2
    v_lshlrev_b32 v7, 3, v7
    v_lshl_add_u32 v7, v4, 5, v7
    s_lshl_b32 s18, s3, 7
    v_add_u32 v7, s18, v7
    ds_write_b64 v7, v[{A}:{A+1}]
    s_waitcnt lgkmcnt(0)
    s_barrier
    s_cmp_lg_u32 s3, 0
    s_cbranch_scc1 L_k1_end
    s_mov_b64 exec, 0xffffffff
    v_lshlrev_b32 v7, 2, v2
    ds_read_b32 v8, v7
    ds_read_b32 v9, v7 offset:128
    ds_read_b32 v10, v7 offset:256
    ds_read_b32 v11, v7 offset:384
    s_lshr_b32 s18, s2, 4
    s_cmp_eq_u32 s18, 1
    s_cselect_b32 s19, 1.0, 0
    s_cmp_eq_u32 s18, 4
    s_cselect_b32 s19, 1.0, s19
    s_lshl_b32 s26, s2, 7
    s_lshl_b32 s27, s2, 6
    v_lshlrev_b32 v12, 1, v2
    s_waitcnt lgkmcnt(0)
    v_add_f32 v8, v8, v9
    v_add_f32 v10, v10, v11
    v_add_f32 v8, v8, v10
    v_cvt_pk_bf16_f32 v8, v8, v8
    v_and_b32 v8, v15, v8
    v_add_f32 v8, s19, v8
    v_cvt_pk_bf16_f32 v9, v8, v8
    v_and_b32 v8, v15, v9
    buffer_store_dword v8, v7, s[12:15], s26 offen
    buffer_store_short v9, v12, s[20:23], s27 offen
    s_cmp_lg_u32 s2, 0
    s_cbranch_scc1 L_k1_nogen
    s_add_u32 s28, s4, {FLG}
    s_addc_u32 s29, s5, 0
    s_load_dword s30, s[28:29], 0
    s_mov_b64 exec, 1
    v_mov_b32 v13, 0
    s_waitcnt lgkmcnt(0)
    s_add_u32 s30, s30, 1
    v_mov_b32 v14, s30
    global_store_dword v13, v14, s[28:29]
    L_k1_nogen:
    ''')
    fin(); k('s_endpgm')
    R = 16
    T = 48
    S = 80; Q = 88
    k(f'''L_k1_ln:
    s_load_dwordx2 s[6:7], s[0:1], {KA['u']}
    s_sub_u32 s16, s2, {N_MOD}
    s_and_b32 s17, s16, 7
    s_lshr_b32 s16, s16, 3
    s_lshl_b32 s17, s17, 3
    s_add_u32 s16, s16, s17
    s_lshl_b32 s16, s16, 2
    s_add_u32 s16, s16, s3
    s_lshl_b32 s17, s16, 13
    v_lshlrev_b32 v3, 4, v2
    s_waitcnt lgkmcnt(0)
    ''')
    k.srd(8, 6, 2048 * 1024)
    for i in range(8):
        k(f'buffer_load_dwordx4 {v(R+4*i,4)}, v3, s[8:11], s17 offen\ns_add_u32 s17, s17, 1024')
    k.srd(12, 4, 512 * 4096, XT)
    k.srd(20, 4, 2048 * 8, STATS)
    k(f'''s_mov_b32 s24, 0x05040100
    s_mov_b32 s25, 0x07060302
    v_mov_b32 v14, 0x3f803f80
    v_mov_b32 v15, 0xffff0000
    v_lshlrev_b32 v4, 15, v2
    s_lshl_b32 s17, s16, 4
    v_lshrrev_b32 v5, 4, v2
    v_lshlrev_b32 v5, 4, v5
    s_lshl_b32 s18, s16, 6
    ''')
    for i in range(8):
        k(f's_waitcnt vmcnt({7-i})')
        k(f'v_dot2_f32_bf16 v{S+i}, v{R+4*i}, v14, 0\nv_dot2_f32_bf16 v{Q+i}, v{R+4*i}, v{R+4*i}, 0')
        for j in range(1, 4):
            k(f'v_dot2_f32_bf16 v{S+i}, v{R+4*i+j}, v14, v{S+i}\nv_dot2_f32_bf16 v{Q+i}, v{R+4*i+j}, v{R+4*i+j}, v{Q+i}')
    for j in range(8):
        sel = 's24' if j % 2 == 0 else 's25'
        for p in range(4):
            k(f'v_perm_b32 v{T+4*j+p}, v{R+4*(2*p+1)+j//2}, v{R+4*(2*p)+j//2}, {sel}')
        k(f'buffer_store_dwordx4 {v(T+4*j,4)}, v4, s[12:15], s17 offen\ns_add_u32 s17, s17, 4096')
    for X in (S, Q):
        for j in range(4): k(f'v_permlane32_swap_b32 v{X+j}, v{X+j+4}')
    for X in (S, Q):
        for j in range(4): k(f'v_add_f32 v{X+j}, v{X+j}, v{X+j+4}')
    for X in (S, Q):
        for j in range(2): k(f'v_permlane16_swap_b32 v{X+j}, v{X+j+2}')
    for X in (S, Q):
        for j in range(2): k(f'v_add_f32 v{X+j}, v{X+j}, v{X+j+2}')
    for ror in (8, 4, 2, 1):
        for X in (S, Q):
            for j in range(2): k(f'v_add_f32_dpp v{X+j}, v{X+j}, v{X+j} row_ror:{ror} row_mask:0xf bank_mask:0xf')
    k(f'''
    v_mul_f32 v6, 0x3b000000, v{S}
    v_mul_f32 v7, 0x3b000000, v{S+1}
    v_mul_f32 v8, 0x3b000000, v{Q}
    v_mul_f32 v9, 0x3b000000, v{Q+1}
    v_fma_f32 v8, -v6, v6, v8
    v_fma_f32 v9, -v7, v7, v9
    v_max_f32 v8, 0, v8
    v_max_f32 v9, 0, v9
    v_cvt_pk_bf16_f32 v10, v6, v7
    v_cvt_pk_bf16_f32 v11, v8, v9
    v_lshlrev_b32 v96, 16, v10
    v_and_b32 v98, v15, v10
    v_lshlrev_b32 v8, 16, v11
    v_and_b32 v9, v15, v11
    v_add_f32 v8, 0x3727c5ac, v8
    v_add_f32 v9, 0x3727c5ac, v9
    v_cvt_pk_bf16_f32 v11, v8, v9
    v_lshlrev_b32 v8, 16, v11
    v_and_b32 v9, v15, v11
    v_sqrt_f32 v8, v8
    v_sqrt_f32 v9, v9
    v_cvt_pk_bf16_f32 v11, v8, v9
    v_lshlrev_b32 v8, 16, v11
    v_and_b32 v9, v15, v11
    v_rcp_f32 v97, v8
    v_rcp_f32 v99, v9
    s_mov_b32 exec_lo, 0x00010001
    s_mov_b32 exec_hi, 0x00010001
    buffer_store_dwordx4 v[96:99], v5, s[20:23], s18 offen
    ''')
    fin(); k('s_endpgm')
    P = 16
    GA = 24
    SA = 32
    k(f'''L_k1_kgen:
    s_load_dwordx4 s[8:11], s[0:1], {KA['Are']}
    s_load_dwordx4 s[12:15], s[0:1], {KA['Bre']}
    s_load_dwordx4 s[16:19], s[0:1], {KA['Cre']}
    s_load_dwordx2 s[20:21], s[0:1], {KA['ldt']}
    s_sub_u32 s22, s2, {N_MOD + N_LN}
    v_and_b32 v3, 127, v0
    s_lshl_b32 s23, s22, 8
    v_lshl_add_u32 v4, v3, 1, s23
    s_lshl_b32 s23, s22, 1
    v_mov_b32 v5, s23
    ''')
    for i in range(7): k(f'v_mov_b32 v{P+i}, 0')
    k('s_waitcnt lgkmcnt(0)')
    for i in range(6):
        k(f'global_load_short_d16_hi v{P+i}, v4, s[{8+2*i}:{9+2*i}]')
    k(f'global_load_short_d16_hi v{P+6}, v5, s[20:21]')
    k.srd(24, 4, 512 * 4096, KREV)
    k(f'''v_mov_b32 v15, 0xffff0000
    v_lshlrev_b32 v6, 3, v0
    v_sub_u32 v6, 2047, v6''')
    for e in range(8):
        k(f'v_subrev_u32 v{GA+e}, {e}, v6\nv_cvt_f32_u32 v{GA+e}, v{GA+e}')
    for e in range(0, 8, 2):
        k(f'''v_cvt_pk_bf16_f32 v7, v{GA+e}, v{GA+e+1}
        v_lshlrev_b32 v{GA+e}, 16, v7
        v_and_b32 v{GA+e+1}, v15, v7''')
    for e in range(8):
        k(f'v_cvt_u32_f32 v{GA+e}, v{GA+e}\nv_lshlrev_b32 v{GA+e}, 1, v{GA+e}')
    k(f'''v_lshrrev_b32 v8, 4, v2
    v_and_b32 v9, 15, v2
    v_lshlrev_b32 v10, 4, v8
    v_mad_u32_u24 v11, v9, {UVS // 16}, v8
    v_lshlrev_b32 v11, 4, v11
    v_lshlrev_b32 v9, 3, v9
    s_cmp_eq_u32 s3, 1
    s_cbranch_scc1 L_k1_sa1
    s_cmp_eq_u32 s3, 2
    s_cbranch_scc1 L_k1_sa2
    v_and_b32 v12, 1, v8
    v_lshrrev_b32 v13, 1, v8
    v_lshlrev_b32 v12, 2, v12
    v_lshl_add_u32 v12, v13, 7, v12
    v_add_u32 v12, v12, v9''')
    for r in range(4): k(f'v_add_u32 v{SA+r}, {r}, v12')
    k(f'''s_branch L_k1_sa_done
    L_k1_sa1:
    v_cmp_gt_u32 vcc, 2, v8
    v_lshlrev_b32 v12, 7, v8
    v_add_u32 v12, 256, v12
    v_lshlrev_b32 v13, 8, v8
    v_cndmask_b32 v12, v13, v12, vcc
    v_add_u32 v12, v12, v9''')
    for r in range(4):
        k(f'v_mov_b32 v13, {4*(r&1) + 128*(r>>1)}\nv_mov_b32 v14, {2*r}\nv_cndmask_b32 v13, v13, v14, vcc\nv_add_u32 v{SA+r}, v12, v13')
    k(f'''s_branch L_k1_sa_done
    L_k1_sa2:
    v_lshlrev_b32 v12, 9, v8
    v_add_u32 v12, 1024, v12
    v_add_u32 v12, v12, v9''')
    for r in range(4): k(f'v_add_u32 v{SA+r}, {128*r}, v12')
    k('L_k1_sa_done:')
    for r in range(4): k(f'v_lshlrev_b32 v{SA+r}, 1, v{SA+r}')
    k(f'''v_lshlrev_b32 v3, 2, v3
    s_mov_b32 s28, {LOG2E}
    s_mov_b32 s29, {INV2PI}
    s_waitcnt vmcnt(0)
    v_mul_f32 v{P+6}, s28, v{P+6}
    v_exp_f32 v{P+6}, v{P+6}
    v_cvt_pk_bf16_f32 v{P+6}, v{P+6}, v{P+6}
    v_and_b32 v{P+6}, v15, v{P+6}
    v_mul_f32 v{P}, v{P}, v{P+6}
    v_mul_f32 v{P+1}, v{P+1}, v{P+6}
    v_mul_f32 v{P+2}, v{P+2}, v{P+6}
    v_mul_f32 v{P+3}, v{P+3}, v{P+6}
    v_mul_f32 v{P}, s28, v{P}
    v_mul_f32 v{P+1}, s29, v{P+1}''')
    CB = 36; TMP = 38
    cmul(k, CB, CB+1, P+4, P+5, P+2, P+3, TMP)
    def direct(dst, l):
        lf = {1: '1.0', 4: '4.0', 8: '0x41000000', 128: '0x43000000', 512: '0x44000000'}[l]
        k(f'''v_mul_f32 v{TMP}, {lf}, v{P}
        v_mul_f32 v{TMP+1}, {lf}, v{P+1}
        v_exp_f32 v{TMP}, v{TMP}
        v_fract_f32 v{TMP+1}, v{TMP+1}
        v_cos_f32 v{dst}, v{TMP+1}
        v_sin_f32 v{dst+1}, v{TMP+1}
        v_mul_f32 v{dst}, v{dst}, v{TMP}
        v_mul_f32 v{dst+1}, v{dst+1}, v{TMP}''')
    cnt = [0]
    def put(row, zr, neg=False):
        t = 44 + (cnt[0] % 4); cnt[0] += 1
        k(f'v_cvt_pk_bf16_f32 v{t}, v{zr}, {"-" if neg else ""}v{zr+1}\nds_write_b32 v3, v{t} offset:{row*UVS}')
    k(f's_cmp_ge_u32 s3, 2\ns_cbranch_scc1 L_k1_halfB')
    E = 48
    E128 = 64; Tk = 66; Z = 74
    def e(r): return E + 2*r
    direct(e(1), 1); direct(E128, 128)
    cmul(k, e(2), e(2)+1, e(1), e(1)+1, e(1), e(1)+1, TMP)
    cmul(k, Tk+2, Tk+3, CB, CB+1, E128, E128+1, TMP+2)
    cmul(k, e(3), e(3)+1, e(2), e(2)+1, e(1), e(1)+1, TMP)
    cmul(k, e(4), e(4)+1, e(2), e(2)+1, e(2), e(2)+1, TMP+2)
    cmul(k, Tk+4, Tk+5, Tk+2, Tk+3, E128, E128+1, TMP)
    cmul(k, e(5), e(5)+1, e(4), e(4)+1, e(1), e(1)+1, TMP+2)
    cmul(k, e(6), e(6)+1, e(4), e(4)+1, e(2), e(2)+1, TMP)
    cmul(k, e(7), e(7)+1, e(4), e(4)+1, e(3), e(3)+1, TMP+2)
    cmul(k, Tk+6, Tk+7, Tk+4, Tk+5, E128, E128+1, TMP)
    tk = [CB, Tk+2, Tk+4, Tk+6]
    rows = [(0, r) for r in range(8)] + [(1, r) for r in range(8)] + [(2, r) for r in (0,2,4,6)] + [(3, r) for r in (0,2,4,6)]
    for i, (kap, rho) in enumerate(rows):
        if rho == 0: put(i, tk[kap])
        else:
            z = Z + 2*(i % 2)
            cmul(k, z, z+1, tk[kap], tk[kap]+1, e(rho), e(rho)+1, TMP + 2*(i % 2))
            put(i, z)
    k('s_branch L_k1_uv_done\nL_k1_halfB:')
    E4 = 48; E8 = 50; E512 = 52; VA = 54; TA = 58
    direct(E8, 8); direct(E128, 128); direct(E512, 512); direct(E4, 4)
    k(f'v_mov_b32 v{VA}, 1.0\nv_mov_b32 v{VA+1}, 0')
    put(48, VA, True); put(49, E8, True)
    cmul(k, TA, TA+1, CB, CB+1, E512, E512+1, TMP)
    vprev = E8; tprev = TA
    for i in range(14):
        vn = VA + 2*(i % 2)
        cmul(k, vn, vn+1, vprev, vprev+1, E8, E8+1, TMP)
        put(50+i, vn, True); vprev = vn
        kap = 4 + i
        if kap <= 16:
            if kap < 8:
                put(24 + 2*(kap-4), tprev)
                cmul(k, Z, Z+1, tprev, tprev+1, E4, E4+1, TMP+2)
                put(25 + 2*(kap-4), Z)
            else:
                put(32 + kap - 8, tprev)
            if kap < 16:
                tn = TA + 2*((i+1) % 2)
                cmul(k, tn, tn+1, tprev, tprev+1, E128, E128+1, TMP+2)
                tprev = tn
    F = 48
    k(f'''L_k1_uv_done:
    s_waitcnt lgkmcnt(0)
    s_barrier
    s_cmp_eq_u32 s3, 3
    s_cbranch_scc1 L_k1_mm_done
    s_mul_i32 s30, s3, {16*UVS}
    v_add_u32 v12, s30, v11''')
    for st in range(8):
        k(f'ds_read_b128 {v(F+8*st,4)}, v12 offset:{64*st}\nds_read_b128 {v(F+8*st+4,4)}, v11 offset:{48*UVS + 64*st}')
    for st in range(8):
        k(f's_waitcnt lgkmcnt({min(15, 14-2*st)})')
        k(f'v_mfma_f32_16x16x32_bf16 v[40:43], {v(F+8*st,4)}, {v(F+8*st+4,4)}, {"0" if st == 0 else "v[40:43]"}')
    k(f'''v_cvt_pk_bf16_f32 v44, v40, v41
    v_cvt_pk_bf16_f32 v45, v42, v43
    ds_write_b16 v{SA}, v44 offset:{KT}
    ds_write_b16_d16_hi v{SA+1}, v44 offset:{KT}
    ds_write_b16 v{SA+2}, v45 offset:{KT}
    ds_write_b16_d16_hi v{SA+3}, v45 offset:{KT}
    L_k1_mm_done:
    s_waitcnt lgkmcnt(0)
    s_barrier''')
    for e_ in range(0, 8, 2):
        k(f'v_mov_b32 v{57+e_}, 0')
    for e_ in range(0, 8, 2):
        k(f'ds_read_u16 v{56+e_}, v{GA+e_} offset:{KT}\nds_read_u16_d16_hi v{57+e_}, v{GA+e_+1} offset:{KT}')
    k(f'''v_lshlrev_b32 v6, 4, v0
    s_lshl_b32 s23, s22, 12
    s_waitcnt lgkmcnt(0)''')
    for e_ in range(0, 8, 2):
        k(f'v_or_b32 v{48+e_//2}, v{56+e_}, v{57+e_}')
    k(f'''buffer_store_dwordx4 v[48:51], v6, s[24:27], s23 offen''')
    fin()
    k('L_k1_end:\ns_endpgm')
    return k

if __name__ == '__main__':
    k1 = build_k1()
    emit([k1], [k1], 'test_k1.s')
```

```python
from asmgen import *
from layout import *

SLOT = 45056; BOFF = 28672
CONST = 160768
STATF = CONST + 2048
K34_LDS = STATF + 1024
NLOG2E = 0xbfb8aa3b
UB = 1792
SC = 'sc1'

def WDL(dl):
    return [2 * SLOT, 2 * SLOT + 28672, 0, SLOT][dl]

def gemm_phases(k, opts=(), S2F=None, SWF=None, poll_all=None, signal=None):
    diag = k.diag
    SCI = SC if 'fused2' in opts else ''
    k(f'''
    s_and_b32 s16, s2, 1
    s_lshl_b32 s16, s16, 3
    s_bfe_u32 s17, s2, 0x30003
    s_add_u32 s16, s16, s17
    s_bfe_u32 s17, s2, 0x20001
    s_lshl_b32 s17, s17, 2
    s_lshr_b32 s18, s2, 6
    s_add_u32 s17, s17, s18
    v_and_b32 v3, 15, v2
    v_lshrrev_b32 v4, 4, v2
    v_lshlrev_b32 v12, 4, v2
    v_mul_u32_u24 v15, 12, v2
    s_and_b32 s50, s2, 7
    s_lshl_b32 s50, s50, 2
    s_bfe_u32 s51, s2, 0x20003
    s_add_u32 s50, s50, s51
    s_lshr_b32 s51, s2, 5
    s_lshr_b32 s56, s3, 2
    s_lshl_b32 s57, s51, 1
    s_add_u32 s58, s57, s56
    s_xor_b32 s56, s56, 1
    s_add_u32 s59, s57, s56
    s_mul_i32 s58, s58, {2*32*UB}
    s_mul_i32 s59, s59, {2*32*UB}
    s_mul_i32 s56, s3, {4*UB}
    s_add_u32 s52, s58, s56
    s_add_u32 s53, s52, {32*UB}
    s_add_u32 s54, s59, s56
    s_add_u32 s55, s54, {32*UB}''')
    k.srd(44, 4, 32 * 32 * UB, WD)
    k.srd(8, 4, 128 * 32 * UB, HH)
    WDR = 128
    def wd_loads(i):
        out = []
        u, kind = divmod(i, 2)
        off = UB * u + 1024 * kind
        for dl in range(4):
            r = WDR + 16 * i + 4 * dl
            pre = ''
            if off > 4095:
                pre = f's_add_u32 s56, s{52+dl}, 4096\n'; so = 's56'; o = off - 4096
            else:
                so = f's{52+dl}'; o = off
            if kind == 0: out.append(f'{pre}buffer_load_dwordx4 {v(r,4)}, v12, s[44:47], {so} offen offset:{o} {SCI}')
            else: out.append(f'{pre}buffer_load_dwordx3 {v(r,3)}, v15, s[44:47], {so} offen offset:{o} {SCI}')
        return out
    k(f's_cmp_ge_u32 s3, 4\ns_cbranch_scc1 L_g_loader')
    ACC = 128
    F = [16, 60]
    SA = 104; UN = 112
    AD = [5, 116, 121]
    def acc(blk, b): return ACC + 4 * (4 * blk + b)
    k(f'''
    s_and_b32 s18, s3, 1
    s_lshr_b32 s19, s3, 1
    s_mul_i32 s20, s18, {7*1024}
    v_add_u32 v5, s20, v12
    v_bfe_u32 v6, v2, 2, 2
    v_and_b32 v7, 1, v4
    v_lshl_or_b32 v7, v7, 2, v6
    s_lshl_b32 s21, s19, 2
    s_lshl_b32 s28, s18, 1
    s_add_u32 s21, s21, s28
    v_xor_b32 v7, s21, v7
    v_lshlrev_b32 v7, 5, v7
    v_lshl_add_u32 v6, v4, 3, v6
    v_lshl_add_u32 v6, v6, 8, v7
    v_and_b32 v7, 3, v2
    v_lshl_add_u32 v6, v7, 3, v6
    v_add_u32 v6, {BOFF}, v6
    v_xor_b32 v7, 32, v6
    v_xor_b32 v8, 64, v6
    v_xor_b32 v9, 96, v6''')
    for sl in (1, 2):
        for j in range(5): k(f'v_add_u32 v{AD[sl]+j}, {sl*SLOT}, v{5+j}')
    k(f'''; epilogue addresses: v10 stats read (local blocks 0,1), v13 (local blocks 2,3), v14 stats write, v11 constants
    s_lshl_b32 s29, s21, 7
    v_lshl_add_u32 v10, v3, 3, s29
    v_xor_b32 v13, 256, v10
    v_lshrrev_b32 v14, 5, v2
    v_lshl_add_u32 v14, v14, 7, v10
    v_add_u32 v10, {STATF}, v10
    v_add_u32 v13, {STATF}, v13
    v_add_u32 v14, {STATF}, v14
    s_mul_i32 s29, s18, {7*128}
    s_add_u32 s29, s29, {CONST}
    v_lshl_add_u32 v11, v4, 4, s29
    v_mov_b32 v1, 0xffff0000
    s_lshl_b32 s22, s17, 1
    s_add_u32 s22, s22, s18
    s_mul_i32 s22, s22, {UB}
    s_lshl_b32 s23, s16, 3''')
    for b in range(4):
        k(f's_xor_b32 s29, s21, {b}\ns_add_u32 s29, s29, s23\ns_mul_i32 s29, s29, {32*UB}\ns_add_u32 s{32+b}, s29, s22')
    for j in range(8): k(f'v_mov_b32 v{SA+j}, 0')
    def reads(n):
        fs = F[n % 2]; ks2 = n % 2; ad = AD[(n // 2) % 3]
        out = []
        for b in range(4):
            out.append(f'ds_read_b64_tr_b16 v[{fs+28+4*b}:{fs+29+4*b}], v{ad+1+b} offset:{8192*ks2}')
            out.append(f'ds_read_b64_tr_b16 v[{fs+30+4*b}:{fs+31+4*b}], v{ad+1+b} offset:{8192*ks2+1024}')
        for blk in range(7):
            out.insert(min(len(out), 2 + 3*blk), f'ds_read_b128 v[{fs+4*blk}:{fs+4*blk+3}], v{ad} offset:{(14*ks2+blk)*1024}')
        return out
    def stats(n):
        fs = F[n % 2]; out = []
        for b in range(2):
            for j in range(4):
                u = UN + 2 * (j % 2); src = fs + 28 + 4*b + j; a_ = SA + 4*b
                out += [f'v_lshlrev_b32 v{u}, 16, v{src}', f'v_and_b32 v{u+1}, v1, v{src}',
                        f'v_add_f32 v{a_}, v{a_}, v{u}', f'v_add_f32 v{a_+1}, v{a_+1}, v{u+1}',
                        f'v_fmac_f32 v{a_+2}, v{u}, v{u}', f'v_fmac_f32 v{a_+3}, v{u+1}, v{u+1}']
        return out
    final = f'''v_add_f32 v{SA}, v{SA}, v{SA+1}
    v_add_f32 v{SA+2}, v{SA+2}, v{SA+3}
    v_add_f32 v{SA+4}, v{SA+4}, v{SA+5}
    v_add_f32 v{SA+6}, v{SA+6}, v{SA+7}
    v_permlane32_swap_b32 v{SA}, v{SA+4}
    v_permlane32_swap_b32 v{SA+2}, v{SA+6}
    v_add_f32 v{SA}, v{SA}, v{SA+4}
    v_add_f32 v{SA+2}, v{SA+2}, v{SA+6}
    v_mov_b32 v{SA+1}, v{SA}
    v_mov_b32 v{SA+3}, v{SA+2}
    v_permlane16_swap_b32 v{SA}, v{SA+1}
    v_permlane16_swap_b32 v{SA+2}, v{SA+3}
    v_add_f32 v{SA}, v{SA}, v{SA+1}
    v_add_f32 v{SA+2}, v{SA+2}, v{SA+3}
    v_mul_f32 v{SA}, 0x3b000000, v{SA}
    v_mul_f32 v{SA+2}, 0x3b000000, v{SA+2}
    v_fma_f32 v{SA+2}, -v{SA}, v{SA}, v{SA+2}
    v_max_f32 v{SA+2}, 0, v{SA+2}
    v_cvt_pk_bf16_f32 v{SA+1}, v{SA+2}, -v{SA}
    v_and_b32 v{SA+4}, v1, v{SA+1}
    v_lshlrev_b32 v{SA+2}, 16, v{SA+1}
    v_add_f32 v{SA+2}, 0x3727c5ac, v{SA+2}
    v_cvt_pk_bf16_f32 v{SA+1}, v{SA+2}, v{SA+2}
    v_and_b32 v{SA+2}, v1, v{SA+1}
    v_sqrt_f32 v{SA+2}, v{SA+2}
    v_cvt_pk_bf16_f32 v{SA+1}, v{SA+2}, v{SA+2}
    v_and_b32 v{SA+2}, v1, v{SA+1}
    v_rcp_f32 v{SA+5}, v{SA+2}
    ds_write_b64 v14, v[{SA+4}:{SA+5}]'''.split('\n')
    k('v_mov_b32 v126, s60\ns_cmp_lg_u32 s3, 0\ns_cbranch_scc1 L_g_s2done')
    poll_all(k, 's2', S2F, 126, 127, 16, 8)
    k(f'''s_cmp_lg_u32 s2, 0
    s_cbranch_scc1 L_g_s2done
    s_mov_b32 s29, {FLG}''')
    signal(k, 29, 126, 127)
    k('L_g_s2done:\ns_barrier')
    k.mark('s2')
    k('s_barrier')
    k.mark('bar0')
    for x in reads(0): k(x)
    for n in range(16):
        k('s_waitcnt lgkmcnt(0)')
        mem = []
        if n % 2 == 1 and n < 15: k('s_barrier')
        if n < 15: mem += reads(n + 1)
        va = stats(n)
        if n == 15: va += final
        fs = F[n % 2]
        total = len(mem) + len(va); done = 0
        for i in range(28):
            blk, b = divmod(i, 4)
            cin = '0' if n == 0 else v(acc(blk, b), 4)
            k(f'v_mfma_f32_16x16x32_bf16 {v(acc(blk,b),4)}, {v(fs+4*blk,4)}, {v(fs+28+4*b,4)}, {cin}')
            want = (total * (i + 1) + 27) // 28
            first = True
            while done < want:
                if mem and (first or not va): k(mem.pop(0))
                else: k(va.pop(0))
                first = False; done += 1
        assert not mem and not va
    k.mark('t1')
    k('s_waitcnt lgkmcnt(0)\ns_barrier')
    S = 16; R2 = 24; C = 32; T = 48; P = 64
    for b in range(4): k(f'ds_read_b64 v[{S+2*b}:{S+2*b+1}], v{10 if b < 2 else 13} offset:{128*(b%2)}')
    k(f'ds_read_b128 {v(C,4)}, v11\nds_read_b128 {v(C+4,4)}, v11 offset:64')
    k(f's_mov_b32 s27, {NLOG2E}\ns_waitcnt lgkmcnt(2)')
    for b in range(4): k(f'v_mul_f32 v{R2+2*b}, s27, v{S+2*b+1}')
    for blk in range(7):
        c = C + 8 * (blk % 2)
        k('s_waitcnt lgkmcnt(0)')
        if blk < 6:
            cn = C + 8 * ((blk + 1) % 2)
            k(f'ds_read_b128 {v(cn,4)}, v11 offset:{128*(blk+1)}\nds_read_b128 {v(cn+4,4)}, v11 offset:{128*(blk+1)+64}')
        for b in range(4):
            A_ = acc(blk, b); t = T + 4*b
            k(f'v_pk_fma_f32 {v(t,2)}, {v(S+2*b,2)}, {v(c,2)}, {v(A_,2)} op_sel_hi:[0,1,1]')
            k(f'v_pk_fma_f32 {v(t+2,2)}, {v(S+2*b,2)}, {v(c+2,2)}, {v(A_+2,2)} op_sel_hi:[0,1,1]')
        for b in range(4):
            t = T + 4*b
            k(f'v_pk_fma_f32 {v(t,2)}, {v(R2+2*b,2)}, {v(t,2)}, {v(c+4,2)} op_sel_hi:[0,1,1]')
            k(f'v_pk_fma_f32 {v(t+2,2)}, {v(S+2*b,2)}, {v(t+2,2)}, {v(c+6,2)} op_sel:[1,0,0] op_sel_hi:[1,1,1]')
        for b in range(4):
            t = T + 4*b
            k(f'v_exp_f32 v{t}, v{t}\nv_exp_f32 v{t+1}, v{t+1}')
        for b in range(4):
            t = T + 4*b
            k(f'v_pk_add_f32 {v(t,2)}, {v(t,2)}, 1.0 op_sel_hi:[1,0]')
        for b in range(4):
            t = T + 4*b
            k(f'v_rcp_f32 v{t}, v{t}\nv_rcp_f32 v{t+1}, v{t+1}')
        for b in range(4):
            t = T + 4*b
            k(f'v_pk_mul_f32 {v(t,2)}, {v(t,2)}, {v(t+2,2)}')
        for b in range(4):
            t = T + 4*b
            k(f'v_cvt_pk_bf16_f32 v{P+8*b+blk}, v{t}, v{t+1}')
        if blk == 3:
            for b in range(4):
                k(f'buffer_store_dwordx4 {v(P+8*b,4)}, v12, s[8:11], s{32+b} offen {SC}')
        if blk == 6:
            for b in range(4):
                k(f'buffer_store_dwordx3 {v(P+8*b+4,3)}, v15, s[8:11], s{32+b} offen offset:1024 {SC}')
    k('s_branch L_g_join')

    CL = 64
    NB = 4
    k(f'''L_g_loader:
    s_sub_u32 s18, s3, 4
    s_mul_i32 s19, s17, {16*14*1024}
    v_mov_b32 v1, 0xffff0000
    v_lshlrev_b32 v6, 1, v4
    v_xor_b32 v6, v6, v3
    v_lshlrev_b32 v6, 4, v6
    v_lshl_add_u32 v7, v4, 12, v6
    v_xor_b32 v8, 128, v7
    s_mul_i32 s20, s18, {7*1024}
    s_lshl_b32 s21, s18, 16
    s_lshl_b32 s22, s16, 8
    s_add_u32 s21, s21, s22
    s_lshl_b32 s22, s18, 12
    s_add_u32 s22, s22, {BOFF}
    s_add_u32 s26, s4, s19
    s_addc_u32 s27, s5, 0
    v_and_b32 v9, 31, v2
    s_lshl_b32 s23, s51, 7
    s_add_u32 s23, s23, {SWF}
    v_lshl_add_u32 v10, v9, 2, s23
    s_mov_b32 s61, 0x40000
    L_g_swpoll:
    global_load_dword v11, v10, s[4:5] {SC}
    s_waitcnt vmcnt(0)
    v_cmp_ne_u32 vcc, s60, v11
    s_cbranch_vccz L_g_swok
    s_sleep 8
    s_sub_u32 s61, s61, 1
    s_cbranch_scc0 L_g_swpoll
    L_g_swok:''')
    k.mark('swok')
    for i in range(NB):
        for x in wd_loads(i): k(x)
    k.srd(32, 26, 16 * 14 * 1024, WP)
    k.srd(12, 4, 512 * 4096, X1T)
    k.srd(28, 4, 16 * 224 * 128, CSB)
    k(f'''v_min_u32 v9, 27, v9
    s_mul_i32 s25, s18, 28
    v_add_u32 v9, s25, v9
    v_lshlrev_b32 v10, 4, v9
    v_lshrrev_b32 v11, 5, v2
    v_mul_u32_u24 v11, {8*224*128}, v11
    v_add_u32 v11, v11, v10
    s_mul_i32 s25, s17, {14*128}
    s_barrier''')
    k.mark('s2')
    def dma(st):
        sl = (st % 3) * SLOT
        k(f's_add_u32 m0, s20, {sl}\ns_add_u32 s23, s20, {st*BOFF}')
        for i in range(4): k(f'buffer_load_dwordx4 v12, s[32:35], s23 offen offset:{1024*i} {SCI} lds')
        k(f's_add_u32 m0, s22, {sl}\ns_add_u32 s24, s21, {st*64*4096}')
        k(f'buffer_load_dwordx4 v7, s[12:15], s24 offen {SCI} lds')
        k(f's_add_u32 m0, s22, {sl+1024}\ns_add_u32 s24, s21, {st*64*4096 + 4*4096}')
        k(f'buffer_load_dwordx4 v7, s[12:15], s24 offen {SCI} lds')
        k(f's_add_u32 m0, s20, {sl+4096}\ns_add_u32 s23, s20, {st*BOFF+4096}')
        for i in range(3): k(f'buffer_load_dwordx4 v12, s[32:35], s23 offen offset:{1024*i} {SCI} lds')
        k(f's_add_u32 m0, s22, {sl+2048}\ns_add_u32 s24, s21, {st*64*4096 + 8*4096}')
        k(f'buffer_load_dwordx4 v8, s[12:15], s24 offen {SCI} lds')
        k(f's_add_u32 m0, s22, {sl+3072}\ns_add_u32 s24, s21, {st*64*4096 + 12*4096}')
        k(f'buffer_load_dwordx4 v8, s[12:15], s24 offen {SCI} lds')
    def wd_dma(dl):
        for q in range(2):
            k(f's_add_u32 m0, s37, {WDL(dl) + 4096*q}\ns_add_u32 s23, s36, {dl*32*UB + 4096*q}')
            for i in range(4 - q): k(f'buffer_load_dwordx4 v12, s[44:47], s23 offen offset:{1024*i} {SCI} lds')
    k(f'''s_mul_i32 s36, s51, {4*32*UB}
    s_mul_i32 s37, s18, {4*UB}
    s_add_u32 s36, s36, s37''')
    dma(0); dma(1)
    for st in range(8):
        k(f's_waitcnt vmcnt({[11, 11, 11, 19, 11, 11, 11, 7][st]})\ns_barrier')
        if st == 0: k.mark('bar0')
        if st <= 5: dma(st + 2)
        if st == 2:
            for i in range(8):
                k(f'buffer_load_dwordx4 {v(CL+4*i,4)}, v11, s[28:31], s25 offen {SCI}\ns_add_u32 s25, s25, {224*128}')
        if st == 5:
            for i in range(1, 8):
                for e in range(4): k(f'v_add_f32 v{CL+e}, v{CL+e}, v{CL+4*i+e}')
            for e in range(4): k(f'v_mov_b32 v{CL+4+e}, v{CL+e}')
            for e in range(4): k(f'v_permlane32_swap_b32 v{CL+e}, v{CL+4+e}')
            for e in range(4): k(f'v_add_f32 v{CL+e}, v{CL+e}, v{CL+4+e}')
            k(f'''v_and_b32 v{CL+4}, 4, v9
            v_cmp_eq_u32 vcc, 0, v{CL+4}
            v_mov_b32 v{CL+5}, {NLOG2E}
            v_cndmask_b32 v{CL+5}, v{CL+5}, 1.0, vcc
            v_mul_f32 v{CL}, v{CL}, v{CL+5}
            v_mul_f32 v{CL+1}, v{CL+1}, v{CL+5}
            v_add_u32 v10, {CONST}, v10
            ds_write_b128 v10, {v(CL,4)}
            s_waitcnt lgkmcnt(0)''')
        if st == 6: wd_dma(0)
        if st == 7: wd_dma(1); wd_dma(2)
    k('s_barrier')
    k.mark('t1')
    wd_dma(3)
    for i in range(NB, 8):
        for x in wd_loads(i): k(x)

    ACC2 = 16; RING = 80
    k('L_g_join:')
    k.mark('join')
    k.srd(12, 4, 0x1000, FLG + 0x3000)
    k(f'''s_mul_i32 s19, s50, {4*32*UB}
    s_mul_i32 s18, s3, {4*UB}
    s_add_u32 s19, s19, s18''')
    for tl in range(4):
        k(f's_add_u32 s21, s3, {tl}\ns_and_b32 s21, s21, 3\ns_mul_i32 s21, s21, {32*UB}\ns_add_u32 s{24+tl}, s19, s21')
    k(f'''
    s_lshl_b32 s21, s16, 7
    s_lshl_b32 s22, s17, 2
    s_add_u32 s21, s21, s22
    v_mov_b32 v6, s21
    s_lshr_b32 s21, s50, 1
    s_lshl_b32 s21, s21, 7
    v_lshl_add_u32 v7, v3, 2, s21
    v_mov_b32 v8, s60''')
    for i in (1, 3, 5, 7):
        for dl in range(4): k(f'v_mov_b32 v{WDR+16*i+4*dl+3}, 0')
    k('s_waitcnt vmcnt(0)')
    k.mark('hhdrain')
    k('s_barrier')
    k.mark('pre3')
    for j in range(12): k(f'v_mov_b32 v{RING+4*j+3}, 0')
    k(f'''s_cmp_ge_u32 s3, 4
    s_cbranch_scc1 L_g_sig
    s_mul_i32 s21, s3, {4*UB}
    v_add_u32 v10, s21, v12
    v_add_u32 v11, s21, v15
    v_add_u32 v13, {2*SLOT}, v10
    v_add_u32 v14, {2*SLOT}, v11''')
    for i in range(8):
        u, kind = divmod(i, 2)
        for dl in range(4):
            r = WDR + 16 * i + 4 * dl; o = WDL(dl) % (2 * SLOT) + u * UB + 1024 * kind
            a4, a3 = (13, 14) if dl < 2 else (10, 11)
            if kind == 0: k(f'ds_read_b128 {v(r,4)}, v{a4} offset:{o}')
            else: k(f'ds_read_b32 v{r}, v{a3} offset:{o}\nds_read_b32 v{r+1}, v{a3} offset:{o+4}\nds_read_b32 v{r+2}, v{a3} offset:{o+8}')
    k(f'''s_waitcnt lgkmcnt(0)
    s_branch L_g_go
    L_g_sig:
    s_cmp_lg_u32 s3, 4
    s_cbranch_scc1 L_g_go
    s_mov_b64 exec, 1
    buffer_store_dword v8, v6, s[12:15], 0 offen {SC}
    s_mov_b64 exec, -1
    s_mov_b32 s21, 0x100000
    L_g_poll:
    buffer_load_dword v9, v7, s[12:15], 0 offen {SC}
    s_waitcnt vmcnt(0)
    v_cmp_ne_u32 vcc, v8, v9
    s_cbranch_vccz L_g_go
    s_sleep 4
    s_sub_u32 s21, s21, 1
    s_cbranch_scc0 L_g_poll
    L_g_go:
    s_barrier''')
    k.mark('s3')
    def hh_loads(i):
        u, kind = divmod(i, 2)
        r = RING + 16 * (i % 3)
        if i and kind == 0:
            for tl in range(4): k(f's_add_u32 s{24+tl}, s{24+tl}, {UB}')
        for tl in range(4):
            if kind == 0: k(f'buffer_load_dwordx4 {v(r+4*tl,4)}, v12, s[8:11], s{24+tl} offen {SC}')
            else: k(f'buffer_load_dwordx3 {v(r+4*tl,3)}, v15, s[8:11], s{24+tl} offen offset:1024 {SC}')
    for i in range(3): hh_loads(i)
    k.srd(32, 4, 512 * 4096, X1T)
    k.srd(36, 4, 4 * 3072 * 4 - 5 * 2048, MODP + 5 * 2048)
    k.srd(40, 6, 2048 * 1024)
    k(f'''s_lshr_b32 s18, s3, 2
    s_and_b32 s19, s3, 3
    s_lshl_b32 s20, s51, 1
    s_add_u32 s20, s20, s18
    s_lshl_b32 s21, s50, 2
    s_add_u32 s21, s21, s19
    v_lshlrev_b32 v6, 15, v4
    v_lshl_add_u32 v6, v3, 1, v6
    s_lshl_b32 s22, s20, 17
    s_lshl_b32 s23, s21, 5
    s_add_u32 s22, s22, s23
    v_lshlrev_b32 v7, 5, v4
    s_lshl_b32 s23, s20, 7
    v_lshlrev_b32 v10, 10, v3
    v_lshl_add_u32 v10, v4, 4, v10
    s_lshl_b32 s28, s21, 14
    s_lshl_b32 s29, s20, 6
    s_add_u32 s28, s28, s29''')
    XF = WDR; GB = WDR + 16
    for i in range(8):
        r = RING + 16 * (i % 3)
        younger = 4 * (min(8, i + 3) - i - 1) + (8 if 1 <= i <= 5 else 0)
        for tl in range(4):
            k(f's_waitcnt vmcnt({younger + 3 - tl})')
            for dl in range(4):
                a_ = ACC2 + 4 * (4 * dl + tl)
                cin = '0' if i == 0 else v(a_, 4)
                k(f'v_mfma_f32_16x16x32_bf16 {v(a_,4)}, {v(WDR+16*i+4*dl,4)}, {v(r+4*tl,4)}, {cin}')
        if i + 3 < 8: hh_loads(i + 3)
        if i == 0:
            for e in range(8): k(f'v_mov_b32 v{XF+e}, 0')
            for e in range(8): k(f'buffer_load_short_d16_hi v{XF+e}, v6, s[32:35], s22 offen {SCI}\ns_add_u32 s22, s22, 4096')
        if i == 2:
            for q in range(4):
                k(f'buffer_load_dwordx4 {v(GB+8*q,4)}, v7, s[36:39], s23 offen {SCI}\nbuffer_load_dwordx4 {v(GB+8*q+4,4)}, v7, s[36:39], s23 offen offset:16 {SCI}\ns_add_u32 s23, s23, {3072*4}')
    k.mark('g2')
    for pl in range(2):
        for tl in range(4):
            if pl == 0 and tl == 0: continue
            k(f'''s_add_u32 s29, s3, {tl}
            s_and_b32 s29, s29, 3
            s_xor_b32 s30, s18, {pl}
            s_lshl_b32 s30, s30, 2
            s_add_u32 s29, s29, s30
            s_mul_i32 s29, s29, 14336
            v_add_u32 v9, s29, v12''')
            for e in range(2):
                k(f'ds_write_b128 v9, {v(ACC2+4*(4*(2*pl+e)+tl),4)} offset:{(4*pl+tl-1)*2048 + 1024*e}')
    k(f's_mul_i32 s29, s3, 14336\nv_add_u32 v9, s29, v12\ns_waitcnt lgkmcnt(0)\ns_barrier')
    k.mark('red')
    RD = WDR + 48
    for e in range(8): k(f'v_add_f32 v{GB+e}, v{GB+e}, v{GB+8+e}\nv_add_f32 v{GB+16+e}, v{GB+16+e}, v{GB+24+e}')
    for e in range(8): k(f'v_add_f32 v{GB+e}, v{GB+e}, v{GB+16+e}')
    for j in range(4): k(f'v_cvt_pk_bf16_f32 v{GB+8+j}, v{GB+2*j}, v{GB+2*j+1}')
    for j in range(4): k(f'v_lshlrev_b32 v{GB+2*j}, 16, v{GB+8+j}\nv_and_b32 v{GB+2*j+1}, v1, v{GB+8+j}')
    for i in range(14): k(f'ds_read_b128 {v(RD+4*i,4)}, v9 offset:{1024*i}')
    for i in range(14):
        k(f's_waitcnt lgkmcnt({13-i})')
        e = i % 2
        for q in range(4): k(f'v_add_f32 v{ACC2+16*e+q}, v{ACC2+16*e+q}, v{RD+4*i+q}')
    k('s_waitcnt vmcnt(0)')
    for e in range(2):
        for q in range(4):
            k(f'v_fma_f32 v{XF+4*e+q}, v{ACC2+16*e+q}, v{GB+4*e+q}, v{XF+4*e+q}')
    for j in range(4): k(f'v_cvt_pk_bf16_f32 v{RING+j}, v{XF+2*j}, v{XF+2*j+1}')
    k(f'buffer_store_dwordx4 {v(RING,4)}, v10, s[40:43], s28 offen')
```

```python
XT    = 0x0000000
X1T   = 0x0200000
ZX    = 0x0400000
KREV  = 0x0600000
WP    = 0x0800000
WD    = 0x0C00000
HH    = 0x0E00000
STATS = 0x1600000
MODF  = 0x1610000
MODH  = 0x1614000
MODP  = 0x16A0000
CSB   = 0x1620000
FLG   = 0x1700000
DIAG  = 0x2000000
WS_USED = 0x1800000
KA = dict(u=0, Are=8, Aim=16, Bre=24, Bim=32, Cre=40, Cim=48, ldt=56, dskip=64, bx=72, wg=80, wu=88, wd=96, c=104, wmod=112, out=120, dbg=128, ws=136)
LOG2E = 0x3fb8aa3b
INV2PI = 0x3e22f983
```

```python
import re, os
_here = os.path.dirname(os.path.abspath(__file__))
HEADER = open(os.path.join(_here, '..', 'cdna_kernels', 'adaLN_cond__ssm_conv_s4__glu_gated_glu__prompt.s.ref')).read().split('; Override launch')[0]

def v(i, n=1): return f'v{i}' if n == 1 else f'v[{i}:{i+n-1}]'
def s(i, n=1): return f's{i}' if n == 1 else f's[{i}:{i+n-1}]'
def a(i, n=1): return f'a{i}' if n == 1 else f'a[{i}:{i+n-1}]'

_reg_re = re.compile(r'^(-?)(?:abs\()?\|?([vsa])(?:(\d+)|\[(\d+):(\d+)\])\|?\)?$')
def regs_of(tok):
    tok = tok.strip()
    if tok in ('vcc',): return {('s', 106), ('s', 107)}
    if tok == 'vcc_lo': return {('s', 106)}
    if tok == 'vcc_hi': return {('s', 107)}
    if tok == 'exec': return {('s', 126), ('s', 127)}
    if tok == 'm0': return {('s', 124)}
    m = _reg_re.match(tok)
    if not m: return set()
    k = m.group(2)
    if m.group(3) is not None: return {(k, int(m.group(3)))}
    return {(k, i) for i in range(int(m.group(4)), int(m.group(5)) + 1)}

TRANS = ('v_exp_f32', 'v_log_f32', 'v_rcp_f32', 'v_rsq_f32', 'v_sqrt_f32', 'v_sin_f32', 'v_cos_f32', 'v_rcp_iflag_f32')

class Ins:
    def __init__(self, line):
        self.line = line
        t = line.split(';')[0].strip()
        parts = t.split(None, 1)
        self.mn = parts[0]
        rest = parts[1] if len(parts) > 1 else ''
        ops = []; cur = ''; depth = 0
        for ch in rest:
            if ch == '[': depth += 1
            if ch == ']': depth -= 1
            if ch == ',' and depth == 0: ops.append(cur.strip()); cur = ''
            else: cur += ch
        if cur.strip(): ops.append(cur.strip())
        self.mods = ''
        if ops:
            sp = ops[-1].split(None, 1)
            if len(sp) > 1: ops[-1] = sp[0]; self.mods = sp[1]
        self.ops = ops
        mn = self.mn
        base = re.sub(r'_(e32|e64|sdwa|dpp)$', '', mn)
        self.base = base
        self.is_mfma = mn.startswith('v_mfma')
        self.is_valu = mn.startswith('v_') and not self.is_mfma
        self.is_ds = mn.startswith('ds_')
        self.is_vmem = mn.startswith(('buffer_', 'global_', 'flat_', 'scratch_'))
        self.is_salu = mn.startswith('s_')
        self.is_trans = base in TRANS
        self.is_dpp = mn.endswith('_dpp') or any(k in self.mods for k in ('row_shr', 'row_ror', 'row_shl', 'quad_perm', 'row_mirror', 'row_half_mirror', 'row_bcast', 'row_newbcast', 'wave_'))
        self.is_permlane = base.startswith('v_permlane')
        self.is_lane = base in ('v_readlane_b32', 'v_readfirstlane_b32', 'v_writelane_b32')
        self.opsel_moves = ('sdwa' in mn and 'dst_sel:DWORD' not in self.mods) or (('op_sel' in self.mods) and not base.startswith('v_pk_') and not self.is_mfma)
        W = set(); R = set()
        o = [regs_of(x) for x in ops]
        self.srcA = self.srcB = self.srcC = set()
        self.store_data = set()
        self.lds_dma = False
        if self.is_mfma:
            W = o[0]; self.srcA, self.srcB, self.srcC = o[1], o[2], o[3]; R = o[1] | o[2] | o[3]
            self.passes = 8 if '32x32' in mn else 4
            if '_f32_32x32x2_f32' in mn or '16x16x4_f32' in mn: raise Exception('sgemm hazards not modelled')
        elif self.is_valu:
            if self.is_permlane and 'swap' in base:
                W = o[0] | o[1]; R = o[0] | o[1]
            elif base.startswith('v_cmp'):
                W = o[0]; R = set().union(*o[1:])
                if base.startswith('v_cmpx'): W = W | regs_of('exec')
            elif base in ('v_add_co_u32', 'v_sub_co_u32', 'v_addc_co_u32', 'v_subb_co_u32', 'v_mad_u64_u32', 'v_div_scale_f32'):
                W = o[0] | o[1]; R = set().union(*o[2:])
            else:
                W = o[0]; R = set().union(*o[1:]) if len(o) > 1 else set()
                if base in ('v_fmac_f32', 'v_dot2c_f32_bf16', 'v_writelane_b32', 'v_pk_fmac_f16') or self.is_dpp or 'sdwa' in mn: R = R | o[0]
                if base == 'v_cndmask_b32' and len(ops) == 3: R = R | regs_of('vcc')
        elif self.is_ds:
            if base.startswith(('ds_read', 'ds_bpermute', 'ds_permute', 'ds_swizzle')) or '_rtn' in base:
                W = o[0]; R = set().union(*o[1:])
                if 'd16' in base: R = R | o[0]
            else:
                R = set().union(*o)
        elif self.is_vmem:
            lds = re.search(r'\blds\b', self.mods) is not None or '_load_lds_' in base
            self.lds_dma = lds
            if 'load' in base and not lds:
                W = o[0]; R = set().union(*o[1:])
                if 'd16' in base: R = R | o[0]
            elif lds:
                R = set().union(*o) | regs_of('m0')
            else:
                R = set().union(*o)
                if 'atomic' in base and 'sc0' in self.mods: W = o[0] if base.startswith('buffer') else o[0]
                if base.startswith('buffer_store'): self.store_data = o[0]
                elif base.startswith('global_store'): self.store_data = o[1]
                if not (base.endswith('x3') or base.endswith('x4')): self.store_data = set()
        elif self.is_salu:
            if base.startswith(('s_cmp', 's_cbranch', 's_branch', 's_waitcnt', 's_nop', 's_barrier', 's_endpgm', 's_setprio', 's_sleep', 's_bitcmp')):
                R = set().union(*o) if o else set()
            else:
                W = o[0] if o else set(); R = set().union(*o[1:]) if len(o) > 1 else set()
                if 'saveexec' in base: W = W | regs_of('exec')
        self.W = W; self.R = R
        self.states = 1
        if base == 's_nop': self.states = int(ops[0], 0) + 1

def need(p, c):
    n = 0
    vW = {r for r in p.W if r[0] != 's'}
    sW = {r for r in p.W if r[0] == 's'}
    if p.is_valu:
        if c.is_mfma and (vW & c.R): n = max(n, 2)
        if c.is_valu:
            if p.is_trans and not c.is_trans and (vW & c.R): n = max(n, 1)
            if p.is_trans and c.is_trans and (vW & c.R): n = max(n, 1)
            if c.is_dpp and (vW & c.R): n = max(n, 2)
            if c.is_permlane and (vW & c.R): n = max(n, 2)
            if c.is_lane and (vW & c.R): n = max(n, 1)
            if p.opsel_moves and (vW & (c.R | c.W)): n = max(n, 1)
            if sW & c.R: n = max(n, 4 if c.is_lane else 2)
            if (sW & regs_of('exec')):
                n = max(n, 5 if c.is_dpp else 4 if (c.is_lane or c.is_permlane) else 0)
        if c.is_mfma and (sW & regs_of('exec')): n = max(n, 4)
        if c.is_vmem and (sW & c.R): n = max(n, 5)
        if c.is_salu and (sW & c.R): n = max(n, 2)
        if p.is_trans and (c.is_vmem or c.is_ds) and (vW & c.R): n = max(n, 1)
        if p.base.startswith('v_dot2') and (vW & (c.R | c.W)):
            same = c.base == p.base and not (vW & set().union(*[regs_of(x) for x in c.ops[1:3]]))
            if not same: n = max(n, 3)
    if p.is_mfma:
        big = 12 if p.passes == 8 else 8
        if c.is_mfma:
            if p.W & (c.srcA | c.srcB): n = max(n, big)
            if p.W & c.srcC and not (p.W == c.srcC and p.passes == c.passes): n = max(n, 10 if p.passes == 8 else 6)
            if p.W & c.W and not (p.W & c.srcC): n = max(n, big)
        else:
            if p.W & (c.R | c.W): n = max(n, big)
            if c.is_valu and (p.srcC & c.W): n = max(n, 7 if p.passes == 8 else 3)
    if p.is_salu and (p.W & regs_of('m0')) and c.lds_dma: n = max(n, 1)
    if p.store_data and (p.store_data & c.W): n = max(n, 2)
    return n

def hazard_pass(lines):
    out = []
    hist = []
    for l in lines:
        t = l.strip()
        if not t or t.startswith(';') or t.startswith('.') or t.endswith(':'):
            out.append(l)
            continue
        c = Ins(t)
        req = 0
        dist = 0
        for p in reversed(hist):
            r = need(p, c) - dist
            if r > req: req = r
            dist += p.states
            if dist >= 12: break
        if req > 0:
            nop = Ins(f's_nop {req-1}')
            out.append(f'    s_nop {req-1}')
            hist.append(nop)
        out.append(l)
        hist.append(c)
        if len(hist) > 24: hist = hist[-24:]
        if c.base in ('s_branch', 's_endpgm'): hist = []
    return out

class Kernel:
    def __init__(self, name, grid, block, lds=0, vgpr=256, sgpr=102, accum=None):
        self.name = name; self.grid = grid; self.block = block; self.lds = lds
        self.vgpr = vgpr; self.sgpr = sgpr; self.accum = accum
        self.lines = []
        self.nlab = 0
    def __call__(self, s=''):
        for l in s.split('\n'):
            l = l.strip()
            if not l: continue
            if l.endswith(':') or l.startswith('.'):
                self.lines.append(l)
            else:
                self.lines.append('    ' + l)
    def label(self, base='L'):
        self.nlab += 1
        return f'L_{self.name}_{base}{self.nlab}'
    def srd(self, d, base, nbytes, off=0):
        if off:
            self(f's_add_u32 s{d}, s{base}, {off}\ns_addc_u32 s{d+1}, s{base+1}, 0')
        else:
            self(f's_mov_b32 s{d}, s{base}\ns_mov_b32 s{d+1}, s{base+1}')
        self(f's_mov_b32 s{d+2}, {nbytes}\ns_mov_b32 s{d+3}, 0x20000')
    diag = False
    def stamp(self, i):
        if self.diag and i == 0: self('s_memrealtime s[94:95]')
        ins = 's_memrealtime' if self.diag == 'rt' else 's_memtime'
        if self.diag: self(f's_waitcnt lgkmcnt(0)\n{ins} s[{70+2*i}:{71+2*i}]\ns_waitcnt lgkmcnt(0)')
    marks = ()
    def mark(self, name):
        if self.diag and name in self.marks: self.stamp(1 + self.marks.index(name))
    def dump_stamps(self, n, area, wave_sgpr=3, wpb=8):
        if not self.diag: return
        self('s_waitcnt vmcnt(0)')
        self.stamp(n - 1)
        self('s_memrealtime s[96:97]\ns_waitcnt lgkmcnt(0)')
        self(f's_load_dwordx2 s[64:65], s[0:1], 136\ns_mov_b64 exec, 1\ns_mul_i32 s68, s2, {wpb}\ns_add_u32 s68, s68, s{wave_sgpr}\ns_lshl_b32 s68, s68, 6\ns_waitcnt lgkmcnt(0)')
        self(f's_add_u32 s64, s64, {area}\ns_addc_u32 s65, s65, 0\ns_mov_b32 s66, 0x1000000\ns_mov_b32 s67, 0x20000\nv_mov_b32 v1, 0')
        for i in range(n):
            if i: self(f's_sub_u32 s{70+2*i}, s{70+2*i}, s70')
            self(f'v_mov_b32 v0, s{70+2*i}\nbuffer_store_dword v0, v1, s[64:67], s68 offen offset:{4*i}')
        self('v_mov_b32 v0, s94\nbuffer_store_dword v0, v1, s[64:67], s68 offen offset:48\nv_mov_b32 v0, s96\nbuffer_store_dword v0, v1, s[64:67], s68 offen offset:52')
        self('s_getreg_b32 s69, hwreg(HW_REG_HW_ID)\nv_mov_b32 v0, s69\nbuffer_store_dword v0, v1, s[64:67], s68 offen offset:60')
        self('s_getreg_b32 s69, hwreg(HW_REG_XCC_ID)\nv_mov_b32 v0, s69\nbuffer_store_dword v0, v1, s[64:67], s68 offen offset:56')
    def text(self):
        o = [f'.globl {self.name}', '.p2align 8', f'.type {self.name},@function', f'{self.name}:']
        o += hazard_pass(self.lines)
        return '\n'.join(o)
    def desc(self):
        acc = self.accum if self.accum is not None else min(256, (self.vgpr + 3) // 4 * 4)
        return f'''.p2align 6
.amdhsa_kernel {self.name}
  .amdhsa_next_free_vgpr {self.vgpr}
  .amdhsa_next_free_sgpr {self.sgpr}
  .amdhsa_accum_offset {acc}
  .amdhsa_group_segment_fixed_size 0
  .amdhsa_kernarg_size 144
  .amdhsa_user_sgpr_count 2
  .amdhsa_user_sgpr_kernarg_segment_ptr 1
  .amdhsa_system_sgpr_workgroup_id_x 1
  .amdhsa_float_denorm_mode_32 3
  .amdhsa_float_denorm_mode_16_64 3
.end_amdhsa_kernel'''

def emit(kernels, order=None, path=None):
    order = order or kernels
    o = [HEADER.rstrip('\n')]
    single = len(order) == 1 and order[0].name.startswith('adaLN')
    for k in order:
        if single: o.append(f'; @launch grid=({k.grid},1,1) block=({k.block},1,1) lds={k.lds}')
        else: o.append(f'; @launch kernel={k.name} grid=({k.grid},1,1) block=({k.block},1,1) lds={k.lds}')
    o.append('.amdgcn_target "amdgcn-amd-amdhsa--gfx950"')
    o.append('.text')
    for k in kernels:
        o.append(k.text())
    o.append('.section .rodata,"a"')
    for k in kernels:
        o.append(k.desc())
    s_ = '\n'.join(o) + '\n'
    if path: open(path, 'w').write(s_)
    return s_
```

```python
from asmgen import *
from layout import *
from sched import mfma_stream
from k1 import cmul
import k34

SC = 'sc1'
UVS = 544
UVCH = 64 * UVS
KT = 2 * UVCH; KTCH = 7680
KC = 85248; KCS = 4160; KCH = 4 * KCS
HB = KC + 2 * KCH; HCH = 4608
XS = HB + 2 * HCH
WT = XS + 8192
MODS = WT + 8 * 4096
LNT = KC; LNS = 2048 + 64
MRED = LNT + 8 * LNS
EX = 0
LDS_BYTES = 163840
WT = WT - 8192; XS = 16384; MODS = WT + 8 * 4096
assert MODS + 256 <= LDS_BYTES and MRED + 2048 <= HB
S1F = FLG + 0x8000; S2F = FLG + 0x10000; SWF = FLG + 0x20000
MIMIC_X1 = True
NT = ''

def poll_all(k, name, flag_off, vtag, vaddr, tmp, sleep):
    k(f'''v_lshlrev_b32 v{vaddr}, 9, v2
    v_add_u32 v{vaddr}, {flag_off}, v{vaddr}
    s_mov_b32 s61, 0x40000
    L_{name}_poll:
    global_load_dword v{tmp}, v{vaddr}, s[4:5] {SC}
    global_load_dword v{tmp+1}, v{vaddr}, s[4:5] offset:128 {SC}
    global_load_dword v{tmp+2}, v{vaddr}, s[4:5] offset:256 {SC}
    global_load_dword v{tmp+3}, v{vaddr}, s[4:5] offset:384 {SC}
    s_waitcnt vmcnt(0)
    v_xor_b32 v{tmp}, v{vtag}, v{tmp}
    v_xor_b32 v{tmp+1}, v{vtag}, v{tmp+1}
    v_xor_b32 v{tmp+2}, v{vtag}, v{tmp+2}
    v_xor_b32 v{tmp+3}, v{vtag}, v{tmp+3}
    v_or3_b32 v{tmp}, v{tmp}, v{tmp+1}, v{tmp+2}
    v_or_b32 v{tmp}, v{tmp}, v{tmp+3}
    v_cmp_ne_u32 vcc, 0, v{tmp}
    s_cbranch_vccz L_{name}_ok
    s_mov_b64 exec, vcc
    s_sleep {sleep}
    s_sub_u32 s61, s61, 1
    s_cbranch_scc0 L_{name}_poll
    L_{name}_ok:
    s_mov_b64 exec, -1''')

def signal(k, flag_off_sgpr, vtag, tmp):
    k(f'''v_lshl_add_u32 v{tmp}, v2, 2, s{flag_off_sgpr}
    s_mov_b64 exec, 0xffffffff
    global_store_dword v{tmp}, v{vtag}, s[4:5] {SC}
    s_mov_b64 exec, -1''')

DEF_MARKS = ('b1', 'b3', 's1', 'hbar', 'p2end', 's2', 'bar0', 't1', 's3')
def build(diag=False, opts=(), marks=DEF_MARKS):
    k = Kernel('adaLN_cond__ssm_conv_s4__glu_gated_glu__prompt_kernel', 256, 512, LDS_BYTES, vgpr=256, sgpr=100 if diag else 64)
    k.diag = diag; k.marks = marks
    O = dict(x if isinstance(x, tuple) else (x, True) for x in opts)
    WPOS = O.get('wpos', 'mid'); NT = O.get('nt', '')
    if diag:
        for i in range(72, 92): k(f's_mov_b32 s{i}, 0')
    k.stamp(0)
    pU, pAre, pLdt = 16, 18, 30
    pDsk, pWg, pWu, pWd, pC, pWm, pOut = 32, 36, 38, 40, 42, 44, 46
    XR = 16; WM = 20; CV = 28; P = 30
    TAG = 15
    k(f'''
    s_cmp_ge_u32 s2, 256
    s_cbranch_scc1 L_end
    s_load_dwordx16 s[16:31], s[0:1], 0
    s_load_dwordx16 s[32:47], s[0:1], 64
    s_load_dwordx2 s[4:5], s[0:1], {KA['ws']}
    v_lshrrev_b32 v1, 6, v0
    v_and_b32 v2, 63, v0
    v_readfirstlane_b32 s3, v1
    v_lshlrev_b32 v12, 4, v2
    s_and_b32 s48, s2, 7
    s_lshl_b32 s48, s48, 5
    s_lshr_b32 s49, s2, 3
    s_add_u32 s48, s48, s49
    s_lshl_b32 s48, s48, 1
    s_lshr_b32 s49, s3, 2
    s_add_u32 s48, s48, s49
    s_lshl_b32 s50, s2, 3
    s_add_u32 s50, s50, s3
    s_lshl_b32 s50, s50, 10
    v_add_u32 v5, s50, v12
    s_min_u32 s51, s2, 191
    s_and_b32 s52, s51, 3
    s_lshr_b32 s53, s51, 2
    s_lshl_b32 s54, s52, 7
    s_lshl_b32 s55, s3, 4
    s_add_u32 s54, s54, s55
    v_lshrrev_b32 v3, 3, v2
    v_add_u32 v3, s54, v3
    v_and_b32 v4, 7, v2
    v_mul_u32_u24 v6, 6144, v3
    v_lshl_add_u32 v6, v4, 4, v6
    s_lshl_b32 s54, s53, 7
    v_add_u32 v6, s54, v6
    v_add_u32 v7, {8*6144}, v6
    v_lshlrev_b32 v8, 1, v3
    v_and_b32 v9, 127, v0
    s_lshl_b32 s54, s48, 8
    v_lshl_add_u32 v10, v9, 1, s54
    s_lshl_b32 s54, s48, 1
    v_mov_b32 v11, s54''')
    for i in range(9): k(f'v_mov_b32 v{CV+i}, 0')
    k('s_waitcnt lgkmcnt(0)')
    k.mark('karg')
    k(f'''global_load_dwordx4 {v(XR,4)}, v5, s[{pU}:{pU+1}]
    global_load_short_d16_hi v{CV}, v8, s[{pC}:{pC+1}]
    global_load_short_d16_hi v{CV+1}, v8, s[{pC}:{pC+1}] offset:16
    global_load_dwordx4 {v(WM,4)}, v6, s[{pWm}:{pWm+1}]
    global_load_dwordx4 {v(WM+4,4)}, v7, s[{pWm}:{pWm+1}]''')
    for i in range(6): k(f'global_load_short_d16_hi v{P+i}, v10, s[{pAre+2*i}:{pAre+2*i+1}]')
    k(f'''global_load_short_d16_hi v{P+6}, v11, s[{pLdt}:{pLdt+1}]
    s_add_u32 s62, s4, {FLG}
    s_addc_u32 s63, s5, 0
    s_load_dword s60, s[62:63], 0
    s_and_b32 s54, s48, -2
    s_lshl_b32 s54, s54, 1
    s_load_dword s59, s[{pDsk}:{pDsk+1}], s54
    s_mov_b64 s[6:7], s[{pOut}:{pOut+1}]
    v_mov_b32 v1, 0xffff0000
    v_mov_b32 v14, 0x3f803f80''')
    GA = 40
    SAD = 52
    k(f'''v_and_b32 v13, 255, v0
    v_lshlrev_b32 v56, 3, v13
    v_sub_u32 v56, 2047, v56''')
    for e in range(12):
        k(f'v_subrev_u32 v{GA+e}, {e}, v56\nv_max_i32 v{GA+e}, 0, v{GA+e}\nv_cvt_f32_u32 v{GA+e}, v{GA+e}')
    for e in range(0, 12, 2):
        k(f'v_cvt_pk_bf16_f32 v57, v{GA+e}, v{GA+e+1}\nv_lshlrev_b32 v{GA+e}, 16, v57\nv_and_b32 v{GA+e+1}, v1, v57')
    k(f's_mul_i32 s54, s49, {KTCH}\ns_add_u32 s54, s54, {KT}')
    for e in range(12):
        k(f'''v_cvt_u32_f32 v{GA+e}, v{GA+e}
        v_lshrrev_b32 v57, 3, v{GA+e}
        v_lshl_add_u32 v{GA+e}, v57, 1, v{GA+e}
        v_lshl_add_u32 v{GA+e}, v{GA+e}, 1, s54''')
    k(f'''v_lshrrev_b32 v4, 4, v2
    v_and_b32 v3, 15, v2
    s_and_b32 s55, s3, 3
    s_cmp_eq_u32 s55, 1
    s_cbranch_scc1 L_sa1
    s_cmp_eq_u32 s55, 2
    s_cbranch_scc1 L_sa2
    v_and_b32 v56, 1, v4
    v_lshrrev_b32 v57, 1, v4
    v_lshlrev_b32 v56, 2, v56
    v_lshl_add_u32 v56, v57, 7, v56''')
    for r in range(4): k(f'v_add_u32 v{SAD+r}, {r}, v56')
    k(f'''s_branch L_sa_done
    L_sa1:
    v_cmp_gt_u32 vcc, 2, v4
    v_lshlrev_b32 v56, 7, v4
    v_add_u32 v56, 256, v56
    v_lshlrev_b32 v57, 8, v4
    v_cndmask_b32 v56, v57, v56, vcc''')
    for r in range(4):
        k(f'v_mov_b32 v57, {4*(r&1) + 128*(r>>1)}\nv_mov_b32 v58, {2*r}\nv_cndmask_b32 v57, v57, v58, vcc\nv_add_u32 v{SAD+r}, v56, v57')
    k(f'''s_branch L_sa_done
    L_sa2:
    v_lshlrev_b32 v56, 9, v4
    v_add_u32 v56, 1024, v56''')
    for r in range(4): k(f'v_add_u32 v{SAD+r}, {128*r}, v56')
    k('L_sa_done:')
    k(f'v_mul_u32_u24 v56, 20, v3\nv_add_u32 v56, s54, v56')
    for r in range(4):
        k(f'''v_lshrrev_b32 v57, 3, v{SAD+r}
        v_lshl_add_u32 v{SAD+r}, v57, 1, v{SAD+r}
        v_lshl_add_u32 v{SAD+r}, v{SAD+r}, 1, v56''')
    k.mark('addr')
    k('s_waitcnt vmcnt(11)')
    k.mark('xin')
    k(f'''
    v_dot2_f32_bf16 v56, v{XR}, v14, 0
    v_dot2_f32_bf16 v57, v{XR}, v{XR}, 0''')
    for j in range(1, 4):
        k(f'v_dot2_f32_bf16 v56, v{XR+j}, v14, v56\nv_dot2_f32_bf16 v57, v{XR+j}, v{XR+j}, v57')
    U = 60
    for j in range(4): k(f'v_lshlrev_b32 v{U+2*j}, 16, v{XR+j}\nv_and_b32 v{U+2*j+1}, v1, v{XR+j}')
    k(f'''v_permlane32_swap_b32 v56, v57
    v_add_f32 v56, v56, v57
    v_mov_b32 v57, v56
    v_permlane16_swap_b32 v56, v57
    v_add_f32 v56, v56, v57''')
    for ror in (8, 4, 2, 1): k(f'v_add_f32_dpp v56, v56, v56 row_ror:{ror} row_mask:0xf bank_mask:0xf')
    k(f'''v_mul_f32 v56, 0x3b000000, v56
    v_mov_b32 v57, v56
    v_permlane32_swap_b32 v56, v57
    v_fma_f32 v57, -v56, v56, v57
    v_max_f32 v57, 0, v57
    v_cvt_pk_bf16_f32 v58, v57, v56
    v_and_b32 v56, v1, v58
    v_lshlrev_b32 v57, 16, v58
    v_add_f32 v57, 0x3727c5ac, v57
    v_cvt_pk_bf16_f32 v58, v57, v57
    v_and_b32 v57, v1, v58
    v_sqrt_f32 v57, v57
    v_cvt_pk_bf16_f32 v58, v57, v57
    v_and_b32 v57, v1, v58
    v_rcp_f32 v57, v57''')
    for e in range(8): k(f'v_sub_f32 v{U+e}, v{U+e}, v56')
    for j in range(4): k(f'v_cvt_pk_bf16_f32 v{68+j}, v{U+2*j}, v{U+2*j+1}')
    for j in range(4): k(f'v_lshlrev_b32 v{U+2*j}, 16, v{68+j}\nv_and_b32 v{U+2*j+1}, v1, v{68+j}')
    for e in range(8): k(f'v_mul_f32 v{U+e}, v{U+e}, v57')
    for j in range(4): k(f'v_cvt_pk_bf16_f32 v{68+j}, v{U+2*j}, v{U+2*j+1}')
    k(f's_mov_b32 s54, 0x05040100\ns_mov_b32 s55, 0x07060302\ns_mul_i32 s56, s3, {LNS}\ns_add_u32 s56, s56, {LNT}\nv_lshl_add_u32 v5, v2, 5, s56')
    for j in range(4):
        k(f'v_perm_b32 v{U+2*j}, v{XR+j}, v{68+j}, s54\nv_perm_b32 v{U+2*j+1}, v{XR+j}, v{68+j}, s55')
    k(f'ds_write_b128 v5, {v(U,4)}\nds_write_b128 v5, {v(U+4,4)} offset:16')
    k.mark('ln')
    A = 72
    k(f's_mov_b32 s54, 0xbfb8aa3b\ns_waitcnt vmcnt(9)')
    for i in range(2): k(f'v_mul_f32 v{56+i}, s54, v{CV+i}')
    for i in range(2): k(f'v_exp_f32 v{56+i}, v{56+i}')
    for i in range(2): k(f'v_add_f32 v{56+i}, 1.0, v{56+i}')
    for i in range(2): k(f'v_rcp_f32 v{56+i}, v{56+i}')
    for i in range(2): k(f'v_mul_f32 v{56+i}, v{56+i}, v{CV+i}')
    k(f'v_cvt_pk_bf16_f32 v58, v56, v57\nv_lshlrev_b32 v{CV}, 16, v58\nv_and_b32 v{CV+1}, v1, v58')
    for i in range(2):
        k(f's_waitcnt vmcnt({8-i})')
        if i == 1: k.mark('wmin')
        for j in range(4): k(f'v_lshlrev_b32 v{U+2*j}, 16, v{WM+4*i+j}\nv_and_b32 v{U+2*j+1}, v1, v{WM+4*i+j}')
        for e in range(8):
            k(f'v_mul_f32 v{A+e}, v{U+e}, v{CV}' if i == 0 else f'v_fmac_f32 v{A+e}, v{U+e}, v{CV+1}')
    for j in range(4): k(f'v_permlane32_swap_b32 v{A+j}, v{A+j+4}')
    for j in range(4): k(f'v_add_f32 v{A+j}, v{A+j}, v{A+j+4}')
    for j in range(2): k(f'v_permlane16_swap_b32 v{A+j}, v{A+j+2}')
    for j in range(2): k(f'v_add_f32 v{A+j}, v{A+j}, v{A+j+2}')
    for j in range(2): k(f'v_add_f32_dpp v{A+j}, v{A+j}, v{A+j} row_ror:8 row_mask:0xf bank_mask:0xf')
    k(f'''v_and_b32 v56, 7, v2
    v_lshlrev_b32 v56, 5, v56
    v_lshl_add_u32 v56, v4, 3, v56
    s_lshl_b32 s54, s3, 8
    s_add_u32 s54, s54, {MRED}
    v_add_u32 v56, s54, v56
    ds_write_b64 v56, v[{A}:{A+1}]
    ''')
    k.mark('modd')
    k(f'''s_waitcnt vmcnt(0) lgkmcnt(0)
    s_barrier''')
    k.mark('b1')
    k(f'''v_mov_b32 v{TAG}, s60
    v_add_u32 v{TAG}, 1, v{TAG}
    s_add_u32 s60, s60, 1
    s_cmp_ge_u32 s3, 4
    s_cbranch_scc1 L_kgen''')
    k(f'''v_bfe_u32 v56, v2, 2, 2
    v_mul_u32_u24 v56, {LNS}, v56
    v_and_b32 v57, 3, v2
    v_lshl_add_u32 v56, v57, 3, v56
    v_lshl_add_u32 v56, v4, 5, v56
    s_lshl_b32 s54, s3, 9
    s_add_u32 s54, s54, {LNT}
    v_add_u32 v56, s54, v56
    v_lshlrev_b32 v57, 2, v2
    v_add_u32 v58, {MRED}, v57''')
    for q in range(4):
        k(f'ds_read_b64_tr_b16 v[{60+4*q}:{61+4*q}], v56 offset:{128*q}\nds_read_b64_tr_b16 v[{62+4*q}:{63+4*q}], v56 offset:{128*q + 4*LNS}')
    for w in range(8): k(f'ds_read_b32 v{76+w}, v58 offset:{256*w}')
    k(f'''s_lshl_b32 s54, s2, 14
    s_lshl_b32 s55, s3, 12
    s_add_u32 s54, s54, s55
    s_add_u32 s54, s54, {ZX}
    v_add_u32 v59, s54, v12''')
    for q in range(4):
        k(f's_waitcnt lgkmcnt({14-2*q})\nglobal_store_dwordx4 v59, {v(60+4*q,4)}, s[4:5] offset:{1024*q} {SC}')
    k(f'''s_cmp_lg_u32 s3, 0
    s_cbranch_scc1 L_kgen
    s_cmp_ge_u32 s2, 192
    s_cbranch_scc1 L_kgen
    s_mul_i32 s54, s52, {3072*4}
    s_lshl_b32 s55, s53, 8
    s_add_u32 s54, s54, s55
    s_add_u32 s54, s54, {MODP}
    v_add_u32 v57, s54, v57
    s_waitcnt lgkmcnt(0)''')
    for st, n in ((1, 8), (2, 8), (4, 8)):
        for j in range(0, 8, 2*st): k(f'v_add_f32 v{76+j}, v{76+j}, v{76+j+st}')
    k(f'global_store_dword v57, v76, s[4:5] {SC}')
    CB = 56; TMP = 58
    k(f'''L_kgen:
    s_min_u32 s54, s3, 6
    s_lshl_b32 s54, s54, 5
    s_and_b32 s55, s2, 15
    s_mul_i32 s55, s55, {32*3584}
    s_add_u32 s54, s54, s55
    s_lshr_b32 s55, s2, 4
    s_mul_i32 s55, s55, 224
    s_add_u32 s54, s54, s55
    v_lshrrev_b32 v16, 1, v2
    v_mul_u32_u24 v16, 3584, v16
    v_and_b32 v17, 1, v2
    v_lshl_add_u32 v16, v17, 4, v16
    v_add_u32 v16, s54, v16
    s_lshr_b32 s54, s2, 3
    s_mul_i32 s54, s54, 56
    s_and_b32 s55, s3, 1
    s_lshl_b32 s55, s55, 5
    s_add_u32 s54, s54, s55
    v_lshrrev_b32 v17, 2, v2
    v_add_u32 v17, s54, v17
    v_add_u32 v18, 16, v17
    v_min_u32 v18, 1791, v18
    s_and_b32 s54, s2, 7
    s_lshl_b32 s54, s54, 7
    s_lshr_b32 s55, s3, 2
    s_lshl_b32 s55, s55, 6
    s_add_u32 s54, s54, s55
    v_and_b32 v19, 3, v2
    v_lshl_add_u32 v19, v19, 4, s54
    v_lshl_add_u32 v17, v17, 10, v19
    v_lshl_add_u32 v18, v18, 10, v19
    s_mul_i32 s54, s49, {UVCH}
    v_lshl_add_u32 v9, v9, 2, s54
    v_mad_u32_u24 v11, v3, {UVS // 16}, v4
    v_lshl_add_u32 v11, v11, 4, s54
    s_mov_b32 s54, {LOG2E}
    s_mov_b32 s55, {INV2PI}
    v_mul_f32 v{P+6}, s54, v{P+6}
    v_exp_f32 v{P+6}, v{P+6}
    v_cvt_pk_bf16_f32 v{P+6}, v{P+6}, v{P+6}
    v_and_b32 v{P+6}, v1, v{P+6}
    v_mul_f32 v{P}, v{P}, v{P+6}
    v_mul_f32 v{P+1}, v{P+1}, v{P+6}
    v_mul_f32 v{P+2}, v{P+2}, v{P+6}
    v_mul_f32 v{P+3}, v{P+3}, v{P+6}
    v_mul_f32 v{P}, s54, v{P}
    v_mul_f32 v{P+1}, s55, v{P+1}''')
    cmul(k, CB, CB+1, P+4, P+5, P+2, P+3, TMP)
    def direct(dst, l):
        lf = {1: '1.0', 4: '4.0', 8: '0x41000000', 128: '0x43000000', 512: '0x44000000'}[l]
        k(f'''v_mul_f32 v{TMP}, {lf}, v{P}
        v_mul_f32 v{TMP+1}, {lf}, v{P+1}
        v_exp_f32 v{TMP}, v{TMP}
        v_fract_f32 v{TMP+1}, v{TMP+1}
        v_cos_f32 v{dst}, v{TMP+1}
        v_sin_f32 v{dst+1}, v{TMP+1}
        v_mul_f32 v{dst}, v{dst}, v{TMP}
        v_mul_f32 v{dst+1}, v{dst+1}, v{TMP}''')
    cnt = [0]
    def put(row, zr, neg=False):
        t = 62 + (cnt[0] % 4); cnt[0] += 1
        k(f'v_cvt_pk_bf16_f32 v{t}, v{zr}, {"-" if neg else ""}v{zr+1}\nds_write_b32 v9, v{t} offset:{row*UVS}')

    RW = 80
    def wloads(skip7=True):
        lab = k.label('now')
        if skip7: k(f's_cmp_eq_u32 s3, 7\ns_cbranch_scc1 {lab}')
        k(f'''global_load_dwordx4 {v(RW,4)}, v16, s[{pWg}:{pWg+1}] {NT}
        global_load_dwordx4 {v(RW+4,4)}, v16, s[{pWu}:{pWu+1}] {NT}
        global_load_dwordx4 {v(RW+8,4)}, v17, s[{pWd}:{pWd+1}] {NT}
        global_load_dwordx4 {v(RW+12,4)}, v18, s[{pWd}:{pWd+1}] {NT}
        {lab}:''')
    def mid_barrier(tag):
        k(f'''s_waitcnt vmcnt(0)
        s_barrier
        s_cmp_lg_u32 s3, 3
        s_cbranch_scc1 L_nosig1{tag}
        s_lshl_b32 s54, s2, 7
        s_add_u32 s54, s54, {S1F}''')
        signal(k, 54, TAG, 96)
        k(f'L_nosig1{tag}:')
        if WPOS == 'mid': wloads()
        k.mark('sig1')
    k(f's_bitcmp1_b32 s3, 1\ns_cbranch_scc1 L_halfB')
    E = 108; E128 = 66; Tk = 68; Z = 76
    def e(r): return E + 2*r
    direct(e(1), 1); direct(E128, 128)
    cmul(k, e(2), e(2)+1, e(1), e(1)+1, e(1), e(1)+1, TMP)
    cmul(k, Tk+2, Tk+3, CB, CB+1, E128, E128+1, TMP+2)
    cmul(k, e(3), e(3)+1, e(2), e(2)+1, e(1), e(1)+1, TMP)
    cmul(k, e(4), e(4)+1, e(2), e(2)+1, e(2), e(2)+1, TMP+2)
    cmul(k, Tk+4, Tk+5, Tk+2, Tk+3, E128, E128+1, TMP)
    cmul(k, e(5), e(5)+1, e(4), e(4)+1, e(1), e(1)+1, TMP+2)
    cmul(k, e(6), e(6)+1, e(4), e(4)+1, e(2), e(2)+1, TMP)
    cmul(k, e(7), e(7)+1, e(4), e(4)+1, e(3), e(3)+1, TMP+2)
    cmul(k, Tk+6, Tk+7, Tk+4, Tk+5, E128, E128+1, TMP)
    mid_barrier('a')
    tk = [CB, Tk+2, Tk+4, Tk+6]
    rows = [(0, r) for r in range(8)] + [(1, r) for r in range(8)] + [(2, r) for r in (0,2,4,6)] + [(3, r) for r in (0,2,4,6)]
    for i, (kap, rho) in enumerate(rows):
        if rho == 0: put(i, tk[kap])
        else:
            z = Z + 2*(i % 2)
            cmul(k, z, z+1, tk[kap], tk[kap]+1, e(rho), e(rho)+1, TMP + 2*(i % 2))
            put(i, z)
    k('s_branch L_uv_done\nL_halfB:')
    E4 = 110; E8 = 112; E512 = 114; VA = 116; TA = 120
    direct(E8, 8); direct(E128, 128); direct(E512, 512); direct(E4, 4)
    k(f'v_mov_b32 v{VA}, 1.0\nv_mov_b32 v{VA+1}, 0')
    put(48, VA, True); put(49, E8, True)
    cmul(k, TA, TA+1, CB, CB+1, E512, E512+1, TMP)
    vprev = E8; tprev = TA
    for i in range(14):
        if i == 1: mid_barrier('b')
        vn = VA + 2*(i % 2)
        cmul(k, vn, vn+1, vprev, vprev+1, E8, E8+1, TMP)
        put(50+i, vn, True); vprev = vn
        kap = 4 + i
        if kap <= 16:
            if kap < 8:
                put(24 + 2*(kap-4), tprev)
                cmul(k, Z, Z+1, tprev, tprev+1, E4, E4+1, TMP+2)
                put(25 + 2*(kap-4), Z)
            else:
                put(32 + kap - 8, tprev)
            if kap < 16:
                tn = TA + 2*((i+1) % 2)
                cmul(k, tn, tn+1, tprev, tprev+1, E128, E128+1, TMP+2)
                tprev = tn
    FK = 128
    k('L_uv_done:')
    k.mark('uv')
    k(f'''
    s_waitcnt lgkmcnt(0)
    s_barrier''')
    k.mark('b2')
    if WPOS == 'b2': wloads()
    k(f'''s_and_b32 s55, s3, 3
    s_cmp_eq_u32 s55, 3
    s_cbranch_scc1 L_b3
    s_mul_i32 s54, s55, {16*UVS}
    v_add_u32 v56, s54, v11''')
    for st in range(8):
        k(f'ds_read_b128 {v(FK+8*st,4)}, v56 offset:{64*st}\nds_read_b128 {v(FK+8*st+4,4)}, v11 offset:{48*UVS + 64*st}')
    for st in range(8):
        k(f's_waitcnt lgkmcnt({14-2*st})')
        k(f'v_mfma_f32_16x16x32_bf16 v[60:63], {v(FK+8*st,4)}, {v(FK+8*st+4,4)}, {"0" if st == 0 else "v[60:63]"}')
    k(f'''v_cvt_pk_bf16_f32 v64, v60, v61
    v_cvt_pk_bf16_f32 v65, v62, v63
    ds_write_b16 v{SAD}, v64
    ds_write_b16_d16_hi v{SAD+1}, v64
    ds_write_b16 v{SAD+2}, v65
    ds_write_b16_d16_hi v{SAD+3}, v65
    L_b3:
    s_waitcnt lgkmcnt(0)
    s_barrier''')
    k.mark('b3')
    if WPOS == 'b3': wloads()
    D = 56
    for j in range(6): k(f'v_mov_b32 v{D+6+j}, 0')
    for j in range(6): k(f'ds_read_u16 v{D+j}, v{GA+2*j}\nds_read_u16_d16_hi v{D+6+j}, v{GA+2*j+1}')
    k(f'''s_mul_i32 s52, s49, {KCH}
    s_add_u32 s52, s52, {KC}
    s_mul_i32 s53, s49, {HCH}
    s_add_u32 s53, s53, {HB}
    s_and_b32 s54, s3, 3
    s_mul_i32 s54, s54, {KCS}
    s_add_u32 s54, s54, s52
    s_add_u32 s54, s54, 4096
    v_and_b32 v5, 1, v2
    v_lshl_add_u32 v5, v5, 4, s54
    v_add_u32 v6, s53, v12
    v_cmp_gt_u32 vcc, 32, v2
    v_mov_b32 v28, 0
    v_mov_b32 v29, 0
    v_mov_b32 v30, 0
    v_mov_b32 v31, 0
    v_cndmask_b32 v5, v5, v6, vcc
    ds_write_b128 v5, v[28:31]
    v_lshl_add_u32 v5, v13, 4, s52
    v_cmp_eq_u32 vcc, 255, v13
    s_waitcnt lgkmcnt(1)''')
    for j in range(6): k(f'v_or_b32 v{D+j}, v{D+j}, v{D+6+j}')
    k(f'v_cndmask_b32 v{D+4}, v{D+4}, 0, vcc\nv_cndmask_b32 v{D+5}, v{D+5}, 0, vcc')
    k(f'ds_write_b128 v5, {v(D,4)}')
    for j in range(4): k(f'v_alignbit_b32 v{68+j}, v{D+j+1}, v{D+j}, 16')
    k(f'ds_write_b128 v5, v[68:71] offset:{KCS}')
    for j in range(4): k(f'v_mov_b32 v{72+j}, v{D+j+1}')
    k(f'ds_write_b128 v5, v[72:75] offset:{2*KCS}')
    for j in range(4): k(f'v_alignbit_b32 v{76+j}, v{D+j+2}, v{D+j+1}, 16')
    k(f'ds_write_b128 v5, v[76:79] offset:{3*KCS}')
    k.mark('kc')
    k(f'''s_and_b32 s54, s3, 3
    s_lshl_b32 s54, s54, 2
    s_lshr_b32 s56, 0x3517, s54
    s_and_b32 s56, s56, 15
    v_add_u32 v8, 1, v4
    v_and_b32 v8, 3, v8
    v_lshlrev_b32 v8, 3, v8
    v_lshl_add_u32 v8, v3, 5, v8
    s_lshl_b32 s56, s56, 9
    s_sub_u32 s56, s56, 512
    v_add_u32 v8, s56, v8
    s_and_b32 s57, s3, 1
    s_lshl_b32 s57, s57, 8
    s_add_u32 s58, s53, 512
    v_add_u32 v7, s58, v8
    v_add_u32 v11, 4, v3
    v_and_b32 v11, 15, v11
    v_sub_u32 v11, 2031, v11
    v_lshl_add_u32 v11, v4, 3, v11
    v_and_b32 v9, 3, v11
    v_lshrrev_b32 v11, 2, v11
    v_lshlrev_b32 v11, 3, v11
    v_mul_u32_u24 v9, {KCS}, v9
    v_add_u32 v11, v11, v9
    s_sub_u32 s54, s52, s57
    s_sub_u32 s54, s54, 3776
    v_add_u32 v11, s54, v11
    v_lshlrev_b32 v9, 4, v4
    v_lshl_add_u32 v9, v3, 5, v9
    s_sub_u32 s54, s53, s57
    s_add_u32 s54, s54, 288
    v_add_u32 v9, s54, v9
    s_lshl_b32 s54, s3, 11
    v_add_u32 v14, s54, v12
    v_lshrrev_b32 v6, 2, v2
    s_lshl_b32 s54, s3, 5
    v_add_u32 v6, s54, v6
    v_and_b32 v22, 3, v2
    v_lshrrev_b32 v23, 1, v22
    v_and_b32 v24, 1, v22
    v_mul_u32_u24 v25, {HCH}, v23
    v_add_u32 v25, {HB + 512}, v25
    v_lshlrev_b32 v26, 12, v23
    v_add_u32 v26, {XS}, v26
    v_cmp_eq_u32 vcc, 0, v24
    v_cndmask_b32 v10, v26, v25, vcc
    v_lshl_add_u32 v10, v6, 4, v10
    v_lshlrev_b32 v6, 14, v6
    v_lshl_add_u32 v6, v22, 4, v6
    s_and_b32 s54, s48, -2
    s_lshl_b32 s55, s54, 5
    s_add_u32 s55, s55, {ZX}
    v_add_u32 v6, s55, v6
    v_mul_u32_u24 v20, {3072*4}, v22
    v_lshrrev_b32 v21, 2, v3
    v_lshl_add_u32 v20, v21, 11, v20
    v_and_b32 v21, 1, v4
    v_lshl_add_u32 v20, v21, 2, v20
    s_lshl_b32 s54, s54, 2
    s_add_u32 s54, s54, {MODP}
    v_add_u32 v20, s54, v20
    v_lshrrev_b32 v21, 5, v2
    v_lshlrev_b32 v21, 11, v21
    v_and_b32 v22, 31, v2
    v_lshl_add_u32 v21, v22, 2, v21
    s_and_b32 s54, s2, 15
    s_lshl_b32 s54, s54, 7
    s_add_u32 s54, s54, {MODP + 3*2048}
    v_add_u32 v21, s54, v21
    s_cmp_lg_u32 s3, 7
    s_cbranch_scc1 L_b5''')
    poll_all(k, 's1', S1F, TAG, 56, 60, O.get('sl1', 3))
    wloads(False)
    k('L_b5:\ns_waitcnt lgkmcnt(0)\ns_barrier')
    k.mark('s1')
    ZR = 24; FRW = 96
    k(f'''global_load_dword v16, v20, s[4:5] {SC}
    global_load_dwordx4 {v(ZR,4)}, v6, s[4:5] {SC}
    v_add_u32 v6, {16 << 14}, v6
    global_load_dwordx4 {v(ZR+4,4)}, v6, s[4:5] {SC}
    s_cmp_lg_u32 s3, 7
    s_cbranch_scc1 L_nomods''')
    for q in range(4):
        k(f'global_load_dword v{32+q}, v21, s[4:5] {SC}\nv_add_u32 v21, {3072*4}, v21')
    k(f'''v_lshlrev_b32 v23, 1, v22
    v_add_u32 v23, {MODS + 128}, v23
    v_lshlrev_b32 v22, 2, v22
    v_add_u32 v22, {MODS}, v22
    s_waitcnt vmcnt(0)
    v_add_f32 v32, v32, v33
    v_add_f32 v34, v34, v35
    v_add_f32 v32, v32, v34
    v_cvt_pk_bf16_f32 v33, v32, v32
    v_and_b32 v32, v1, v33
    v_add_f32 v32, 1.0, v32
    v_cvt_pk_bf16_f32 v32, v32, v32
    v_and_b32 v32, v1, v32
    s_mov_b64 exec, 0xffffffff
    ds_write_b16 v23, v33
    s_not_b64 exec, exec
    ds_write_b32 v22, v32
    s_mov_b64 exec, -1
    L_nomods:
    s_lshl_b32 s54, s3, 12
    s_add_u32 s54, s54, {WT}
    v_lshl_add_u32 v56, v2, 5, s54
    v_add_u32 v57, s54, v12
    v_bfe_u32 v58, v2, 2, 2
    v_lshl_add_u32 v58, v4, 3, v58
    v_and_b32 v59, 3, v2
    v_lshlrev_b32 v60, 3, v59
    v_lshl_add_u32 v58, v58, 6, v60
    v_add_u32 v58, s54, v58
    v_bfe_u32 v60, v2, 3, 1
    v_bfe_u32 v61, v2, 2, 1
    v_lshl_add_u32 v61, v4, 1, v61
    v_lshl_add_u32 v60, v60, 3, v61
    s_bfe_u32 s55, s3, 0x10001
    s_lshl_b32 s55, s55, 3
    s_add_u32 s54, s54, s55
    v_lshl_add_u32 v59, v59, 4, s54
    v_lshl_add_u32 v60, v60, 6, v59
    s_and_b32 s54, s2, 7
    s_lshl_b32 s54, s54, 2
    s_lshr_b32 s55, s3, 1
    s_add_u32 s54, s54, s55
    s_lshl_b32 s54, s54, 5
    s_lshr_b32 s55, s2, 3
    s_add_u32 s54, s54, s55
    s_mul_i32 s54, s54, {k34.UB}
    s_add_u32 s54, s54, {WD}
    s_waitcnt vmcnt(3)''')
    for j_ in range(4):
        k(f'ds_write2_b32 v56, v{RW+j_}, v{RW+4+j_} offset0:{2*j_} offset1:{2*j_+1}')
    k(f'''ds_write_b128 v57, {v(RW+8,4)} offset:2048
    ds_write_b128 v57, {v(RW+12,4)} offset:3072
    s_waitcnt lgkmcnt(0)
    ds_read_b64_tr_b16 v[{FRW}:{FRW+1}], v58
    ds_read_b64_tr_b16 v[{FRW+2}:{FRW+3}], v58 offset:256
    ds_read_b64_tr_b16 v[{FRW+4}:{FRW+5}], v58 offset:32
    ds_read_b64_tr_b16 v[{FRW+6}:{FRW+7}], v58 offset:288
    ds_read_b64_tr_b16 v[104:105], v60 offset:2048
    ds_read_b64_tr_b16 v[106:107], v60 offset:3072
    s_lshl_b32 s55, s49, 4
    s_lshr_b32 s59, s59, s55
    s_lshl_b32 s59, s59, 16
    v_mov_b32 v55, s59
    s_lshl_b32 s55, s49, 12
    s_add_u32 s55, s55, {XS}
    v_add_u32 v13, s55, v8
    s_waitcnt vmcnt(2)
    v_add_f32_dpp v16, v16, v16 quad_perm:[1,0,3,2] row_mask:0xf bank_mask:0xf
    v_add_f32_dpp v16, v16, v16 quad_perm:[2,3,0,1] row_mask:0xf bank_mask:0xf
    v_cvt_pk_bf16_f32 v16, v16, v16
    v_and_b32 v16, v1, v16
    v_add_f32 v17, 1.0, v16
    v_cvt_pk_bf16_f32 v17, v17, v17
    v_and_b32 v17, v1, v17
    v_readlane_b32 s16, v16, 0
    v_readlane_b32 s17, v17, 4
    v_readlane_b32 s18, v16, 8
    v_readlane_b32 s19, v16, 16
    v_readlane_b32 s20, v17, 20
    v_readlane_b32 s21, v16, 24
    v_and_b32 v18, 3, v2
    v_cmp_eq_u32 s[22:23], 0, v18
    v_cmp_eq_u32 s[24:25], 2, v18
    v_mov_b32 v52, 0
    v_mov_b32 v53, 1.0
    v_mov_b32 v16, s16
    v_mov_b32 v17, s17
    v_mov_b32 v18, s19
    v_mov_b32 v19, s20
    v_cndmask_b32 v52, v52, v16, s[22:23]
    v_cndmask_b32 v53, v53, v17, s[22:23]
    v_cndmask_b32 v52, v52, v18, s[24:25]
    v_cndmask_b32 v53, v53, v19, s[24:25]
    s_cmp_eq_u32 s49, 0
    s_cselect_b32 s18, s18, s21
    v_mov_b32 v54, s18''')
    H = 56
    for q in range(2):
        k(f's_waitcnt vmcnt({1-q})')
        for j_ in range(4): k(f'v_lshlrev_b32 v{H+2*j_}, 16, v{ZR+4*q+j_}\nv_and_b32 v{H+2*j_+1}, v1, v{ZR+4*q+j_}')
        for e_ in range(8): k(f'v_fma_f32 v{H+e_}, v{H+e_}, v53, v52')
        for j_ in range(4): k(f'v_cvt_pk_bf16_f32 v{ZR+4*q+j_}, v{H+2*j_}, v{H+2*j_+1}')
        k(f'ds_write_b128 v10, {v(ZR+4*q,4)} offset:{256*q}')
    k(f'''s_waitcnt lgkmcnt(2)
    s_bitcmp1_b32 s3, 0
    s_cbranch_scc1 L_wd3
    v_add_u32 v57, s54, v12
    global_store_dwordx4 v57, v[104:107], s[4:5] {SC}
    s_branch L_wd_done
    L_wd3:
    v_mul_u32_u24 v57, 12, v2
    v_add_u32 v57, s54, v57
    global_store_dwordx3 v57, v[104:106], s[4:5] offset:1024 {SC}
    L_wd_done:
    s_waitcnt lgkmcnt(0)
    s_barrier''')
    k.mark('hbar')
    k(f'''v_lshlrev_b32 v56, 5, v4
    v_add_u32 v56, {MODS}, v56
    v_lshlrev_b32 v57, 4, v4
    v_add_u32 v58, {MODS + 128}, v57
    ds_read_b128 v[60:63], v56
    ds_read_b128 v[64:67], v56 offset:16
    ds_read_b128 v[68:71], v58
    v_mov_b32 v72, 0x3f803f80
    v_mov_b32 v73, v72
    v_mov_b32 v74, v72
    v_mov_b32 v75, v72
    s_min_u32 s54, s3, 6
    s_mul_i32 s55, s2, {14*1024}
    s_lshl_b32 s56, s54, 11
    s_add_u32 s55, s55, s56
    s_add_u32 s55, s55, {WP}
    v_add_u32 v56, s55, v12
    s_and_b32 s55, s2, 15
    s_mul_i32 s55, s55, {224*128}
    s_lshr_b32 s56, s2, 4
    s_mul_i32 s56, s56, {14*128}
    s_add_u32 s55, s55, s56
    s_lshl_b32 s56, s54, 8
    s_add_u32 s55, s55, s56
    s_add_u32 s55, s55, {CSB}
    v_add_u32 v57, s55, v57
    s_waitcnt lgkmcnt(0)
    v_mfma_f32_16x16x32_bf16 v[20:23], {v(FRW,4)}, v[68:71], 0
    v_mfma_f32_16x16x32_bf16 v[28:31], {v(FRW+4,4)}, v[68:71], 0''')
    for j in range(8):
        k(f'''v_lshlrev_b32 v76, 16, v{FRW+j}
        v_and_b32 v77, v1, v{FRW+j}
        v_mul_f32 v76, v76, v{60+2*(j%4)}
        v_mul_f32 v77, v77, v{61+2*(j%4)}
        v_cvt_pk_bf16_f32 v{88+j}, v76, v77''')
    k(f'''global_store_dwordx4 v56, v[88:91], s[4:5] {SC}
    global_store_dwordx4 v56, v[92:95], s[4:5] offset:1024 {SC}
    v_mfma_f32_16x16x32_bf16 v[16:19], v[88:91], v[72:75], 0
    v_mfma_f32_16x16x32_bf16 v[24:27], v[92:95], v[72:75], 0
    v_lshl_add_u32 v57, v3, 6, v57
    v_cmp_eq_u32 s[22:23], 1, v3
    v_cmp_eq_u32 s[24:25], 2, v3
    v_cmp_eq_u32 s[26:27], 3, v3''')
    for q in range(4):
        k(f'v_cndmask_b32 v{32+q}, v{16+q}, v{20+q}, s[22:23]\nv_cndmask_b32 v{32+q}, v{32+q}, v{24+q}, s[24:25]\nv_cndmask_b32 v{32+q}, v{32+q}, v{28+q}, s[26:27]')
    k(f'''s_mov_b32 exec_lo, 0x000f000f
    s_mov_b32 exec_hi, 0x000f000f
    global_store_dwordx4 v57, v[32:35], s[4:5] {SC}
    s_mov_b64 exec, -1
    s_nop 1''')
    k.mark('prep')
    k(f'''s_bitcmp1_b32 s3, 1
    s_cbranch_scc1 L_set1''')
    ACC = 16
    slots = [32, 36, 40, 44, 48] + [56 + 4*i for i in range(18)]
    def conv_path(blocks):
        mf = []; fl = {}
        qmax = max(blocks)
        for m0 in (0, 2, 4, 6):
            for q in range(qmax + 1):
                fl[('A', m0, q)] = (lambda r, m0=m0, q=q: [f'ds_read_b64 v[{r}:{r+1}], v11 offset:{3776 - 32*m0 - 512*q}',
                                                           f'ds_read_b64 v[{r+2}:{r+3}], v11 offset:{3776 - 32*m0 - 512*q + 8}'])
                fl[('B', m0, q)] = (lambda r, m0=m0, q=q: [f'ds_read_b128 v[{r}:{r+3}], v9 offset:{192 - 32*m0 + 512*q}'])
            for q in range(qmax + 1):
                for bi, c in enumerate(blocks):
                    if q <= c: mf.append((ACC + 4*bi, ('A', m0, q), ('B', m0, c - q)))
        mfma_stream(k, mf, fl, slots, per_gap=2, pre=12)
    conv_path([7, 6, 1, 0])
    k('s_branch L_conv_done\nL_set1:')
    conv_path([5, 4, 3, 2])
    XE = 48
    k('L_conv_done:')
    k.mark('conv')
    k(f'''s_nop 7
    ds_read_b64 v[56:57], v7 offset:512
    ds_read_b64 v[58:59], v7
    ds_read_b64 v[{XE}:{XE+1}], v13 offset:512
    ds_read_b64 v[{XE+2}:{XE+3}], v13
    v_xor_b32 v5, 2048, v14
    s_bitcmp1_b32 s3, 0
    s_cbranch_scc1 L_mh1
    ds_write_b128 v14, v[24:27]
    ds_write_b128 v14, v[28:31] offset:1024
    s_branch L_sent
    L_mh1:
    ds_write_b128 v14, v[16:19]
    ds_write_b128 v14, v[20:23] offset:1024''')
    for j in range(8): k(f'v_mov_b32 v{16+j}, v{24+j}')
    HF = 60; XF = 68
    k(f'L_sent:\ns_waitcnt lgkmcnt(2)')
    for j in range(4):
        k(f'v_lshlrev_b32 v{HF+2*j}, 16, v{56+j}\nv_and_b32 v{HF+2*j+1}, v1, v{56+j}')
        k(f'v_lshlrev_b32 v{XF+2*j}, 16, v{XE+j}\nv_and_b32 v{XF+2*j+1}, v1, v{XE+j}')
    def rnd(base):
        for j in range(4): k(f'v_cvt_pk_bf16_f32 v{76+j}, v{base+2*j}, v{base+2*j+1}')
        for j in range(4): k(f'v_lshlrev_b32 v{base+2*j}, 16, v{76+j}\nv_and_b32 v{base+2*j+1}, v1, v{76+j}')
    if MIMIC_X1:
        for e_ in range(8): k(f'v_mul_f32 v{HF+e_}, v{HF+e_}, v55')
        rnd(HF)
    k(f'''s_lshl_b32 s54, s48, 12
    s_add_u32 s54, s54, {X1T}
    v_add_u32 v8, s54, v8
    s_lshl_b32 s54, s2, 7
    s_add_u32 s54, s54, {SWF}
    s_waitcnt vmcnt(0) lgkmcnt(0)
    s_barrier
    s_cmp_lg_u32 s3, 2
    s_cbranch_scc1 L_nosige''')
    signal(k, 54, TAG, 24)
    k(f'''L_nosige:
    ds_read_b128 v[24:27], v5
    ds_read_b128 v[28:31], v5 offset:1024
    s_waitcnt lgkmcnt(0)''')
    for e_ in range(8): k(f'v_add_f32 v{16+e_}, v{16+e_}, v{24+e_}')
    if MIMIC_X1:
        rnd(16)
        for e_ in range(8): k(f'v_add_f32 v{16+e_}, v{16+e_}, v{HF+e_}')
        rnd(16)
        for e_ in range(8): k(f'v_mul_f32 v{16+e_}, v{16+e_}, v54')
        rnd(16)
        for e_ in range(8): k(f'v_add_f32 v{16+e_}, v{16+e_}, v{XF+e_}')
    else:
        for e_ in range(8): k(f'v_fmac_f32 v{16+e_}, v{HF+e_}, v55')
        for e_ in range(8): k(f'v_fma_f32 v{16+e_}, v{16+e_}, v54, v{XF+e_}')
    for j in range(4): k(f'v_cvt_pk_bf16_f32 v{76+j}, v{16+2*j}, v{17+2*j}')
    k.mark('cepi')
    k(f'''global_store_dwordx2 v8, v[76:77], s[4:5] offset:512 {SC}
    global_store_dwordx2 v8, v[78:79], s[4:5] {SC}
    s_lshl_b32 s54, s2, 7
    s_add_u32 s54, s54, {S2F}
    s_waitcnt vmcnt(0)
    s_barrier
    s_cmp_lg_u32 s3, 1
    s_cbranch_scc1 L_nosig2''')
    signal(k, 54, TAG, 56)
    k('L_nosig2:')
    k.mark('p2end')
    k34.gemm_phases(k, tuple(opts) + ('fused2',), S2F=S2F, SWF=SWF, poll_all=poll_all, signal=signal)
    k.dump_stamps(11, DIAG)
    k('L_end:\ns_endpgm')
    return k
```

```python
from asmgen import *
from layout import *

SLOT = 45056; BOFF = 28672
CONST = 160768
STATF = CONST + 2048
K34_LDS = STATF + 1024
NLOG2E = 0xbfb8aa3b
UB = 1792
SC = 'sc1'

def WDL(dl):
    return [2 * SLOT, 2 * SLOT + 28672, 0, SLOT][dl]

def gemm_phases(k, opts=(), S2F=None, SWF=None, poll_all=None, signal=None):
    diag = k.diag
    O = dict(x if isinstance(x, tuple) else (x, True) for x in opts)
    SCI = SC if 'fused2' in opts else ''
    k(f'''
    s_and_b32 s16, s2, 1
    s_lshl_b32 s16, s16, 3
    s_bfe_u32 s17, s2, 0x30003
    s_add_u32 s16, s16, s17
    s_bfe_u32 s17, s2, 0x20001
    s_lshl_b32 s17, s17, 2
    s_lshr_b32 s18, s2, 6
    s_add_u32 s17, s17, s18
    v_and_b32 v3, 15, v2
    v_lshrrev_b32 v4, 4, v2
    v_lshlrev_b32 v12, 4, v2
    v_mul_u32_u24 v15, 12, v2
    s_and_b32 s50, s2, 7
    s_lshl_b32 s50, s50, 2
    s_bfe_u32 s51, s2, 0x20003
    s_add_u32 s50, s50, s51
    s_lshr_b32 s51, s2, 5
    s_lshr_b32 s56, s3, 2
    s_lshl_b32 s57, s51, 1
    s_add_u32 s58, s57, s56
    s_xor_b32 s56, s56, 1
    s_add_u32 s59, s57, s56
    s_mul_i32 s58, s58, {2*32*UB}
    s_mul_i32 s59, s59, {2*32*UB}
    s_mul_i32 s56, s3, {4*UB}
    s_add_u32 s52, s58, s56
    s_add_u32 s53, s52, {32*UB}
    s_add_u32 s54, s59, s56
    s_add_u32 s55, s54, {32*UB}''')
    k.srd(44, 4, 32 * 32 * UB, WD)
    k.srd(8, 4, 128 * 32 * UB, HH)
    WDR = 128
    def wd_loads(i):
        out = []
        u, kind = divmod(i, 2)
        off = UB * u + 1024 * kind
        for dl in range(4):
            r = WDR + 16 * i + 4 * dl
            pre = ''
            if off > 4095:
                pre = f's_add_u32 s56, s{52+dl}, 4096\n'; so = 's56'; o = off - 4096
            else:
                so = f's{52+dl}'; o = off
            if kind == 0: out.append(f'{pre}buffer_load_dwordx4 {v(r,4)}, v12, s[44:47], {so} offen offset:{o} {SCI}')
            else: out.append(f'{pre}buffer_load_dwordx3 {v(r,3)}, v15, s[44:47], {so} offen offset:{o} {SCI}')
        return out
    k(f's_cmp_ge_u32 s3, 4\ns_cbranch_scc1 L_g_loader')
    ACC = 128
    F = [16, 60]
    SA = 104; UN = 112
    AD = [5, 116, 121]
    def acc(blk, b): return ACC + 4 * (4 * blk + b)
    k(f'''
    s_and_b32 s18, s3, 1
    s_lshr_b32 s19, s3, 1
    s_mul_i32 s20, s18, {7*1024}
    v_add_u32 v5, s20, v12
    v_bfe_u32 v6, v2, 2, 2
    v_and_b32 v7, 1, v4
    v_lshl_or_b32 v7, v7, 2, v6
    s_lshl_b32 s21, s19, 2
    s_lshl_b32 s28, s18, 1
    s_add_u32 s21, s21, s28
    v_xor_b32 v7, s21, v7
    v_lshlrev_b32 v7, 5, v7
    v_lshl_add_u32 v6, v4, 3, v6
    v_lshl_add_u32 v6, v6, 8, v7
    v_and_b32 v7, 3, v2
    v_lshl_add_u32 v6, v7, 3, v6
    v_add_u32 v6, {BOFF}, v6
    v_xor_b32 v7, 32, v6
    v_xor_b32 v8, 64, v6
    v_xor_b32 v9, 96, v6''')
    for sl in (1, 2):
        for j in range(5): k(f'v_add_u32 v{AD[sl]+j}, {sl*SLOT}, v{5+j}')
    k(f'''; epilogue addresses: v10 stats read (local blocks 0,1), v13 (local blocks 2,3), v14 stats write, v11 constants
    s_lshl_b32 s29, s21, 7
    v_lshl_add_u32 v10, v3, 3, s29
    v_xor_b32 v13, 256, v10
    v_lshrrev_b32 v14, 5, v2
    v_lshl_add_u32 v14, v14, 7, v10
    v_add_u32 v10, {STATF}, v10
    v_add_u32 v13, {STATF}, v13
    v_add_u32 v14, {STATF}, v14
    s_mul_i32 s29, s18, {7*128}
    s_add_u32 s29, s29, {CONST}
    v_lshl_add_u32 v11, v4, 4, s29
    v_mov_b32 v1, 0xffff0000
    s_lshl_b32 s22, s17, 1
    s_add_u32 s22, s22, s18
    s_mul_i32 s22, s22, {UB}
    s_lshl_b32 s23, s16, 3''')
    for b in range(4):
        k(f's_xor_b32 s29, s21, {b}\ns_add_u32 s29, s29, s23\ns_mul_i32 s29, s29, {32*UB}\ns_add_u32 s{32+b}, s29, s22')
    for j in range(8): k(f'v_mov_b32 v{SA+j}, 0')
    def reads(n):
        fs = F[n % 2]; ks2 = n % 2; ad = AD[(n // 2) % 3]
        out = []
        for b in range(4):
            out.append(f'ds_read_b64_tr_b16 v[{fs+28+4*b}:{fs+29+4*b}], v{ad+1+b} offset:{8192*ks2}')
            out.append(f'ds_read_b64_tr_b16 v[{fs+30+4*b}:{fs+31+4*b}], v{ad+1+b} offset:{8192*ks2+1024}')
        for blk in range(7):
            out.insert(min(len(out), 2 + 3*blk), f'ds_read_b128 v[{fs+4*blk}:{fs+4*blk+3}], v{ad} offset:{(14*ks2+blk)*1024}')
        return out
    def stats(n):
        fs = F[n % 2]; out = []
        for b in range(2):
            for j in range(4):
                u = UN + 2 * (j % 2); src = fs + 28 + 4*b + j; a_ = SA + 4*b
                out += [f'v_lshlrev_b32 v{u}, 16, v{src}', f'v_and_b32 v{u+1}, v1, v{src}',
                        f'v_add_f32 v{a_}, v{a_}, v{u}', f'v_add_f32 v{a_+1}, v{a_+1}, v{u+1}',
                        f'v_fmac_f32 v{a_+2}, v{u}, v{u}', f'v_fmac_f32 v{a_+3}, v{u+1}, v{u+1}']
        return out
    final = f'''v_add_f32 v{SA}, v{SA}, v{SA+1}
    v_add_f32 v{SA+2}, v{SA+2}, v{SA+3}
    v_add_f32 v{SA+4}, v{SA+4}, v{SA+5}
    v_add_f32 v{SA+6}, v{SA+6}, v{SA+7}
    v_permlane32_swap_b32 v{SA}, v{SA+4}
    v_permlane32_swap_b32 v{SA+2}, v{SA+6}
    v_add_f32 v{SA}, v{SA}, v{SA+4}
    v_add_f32 v{SA+2}, v{SA+2}, v{SA+6}
    v_mov_b32 v{SA+1}, v{SA}
    v_mov_b32 v{SA+3}, v{SA+2}
    v_permlane16_swap_b32 v{SA}, v{SA+1}
    v_permlane16_swap_b32 v{SA+2}, v{SA+3}
    v_add_f32 v{SA}, v{SA}, v{SA+1}
    v_add_f32 v{SA+2}, v{SA+2}, v{SA+3}
    v_mul_f32 v{SA}, 0x3b000000, v{SA}
    v_mul_f32 v{SA+2}, 0x3b000000, v{SA+2}
    v_fma_f32 v{SA+2}, -v{SA}, v{SA}, v{SA+2}
    v_max_f32 v{SA+2}, 0, v{SA+2}
    v_cvt_pk_bf16_f32 v{SA+1}, v{SA+2}, -v{SA}
    v_and_b32 v{SA+4}, v1, v{SA+1}
    v_lshlrev_b32 v{SA+2}, 16, v{SA+1}
    v_add_f32 v{SA+2}, 0x3727c5ac, v{SA+2}
    v_cvt_pk_bf16_f32 v{SA+1}, v{SA+2}, v{SA+2}
    v_and_b32 v{SA+2}, v1, v{SA+1}
    v_sqrt_f32 v{SA+2}, v{SA+2}
    v_cvt_pk_bf16_f32 v{SA+1}, v{SA+2}, v{SA+2}
    v_and_b32 v{SA+2}, v1, v{SA+1}
    v_rcp_f32 v{SA+5}, v{SA+2}
    ds_write_b64 v14, v[{SA+4}:{SA+5}]'''.split('\n')
    k('v_mov_b32 v126, s60\ns_cmp_lg_u32 s3, 0\ns_cbranch_scc1 L_g_s2done')
    poll_all(k, 's2', S2F, 126, 127, 16, O.get('sl2', 3))
    k(f'''s_cmp_lg_u32 s2, 0
    s_cbranch_scc1 L_g_s2done
    s_mov_b32 s29, {FLG}''')
    signal(k, 29, 126, 127)
    k('L_g_s2done:\ns_barrier')
    k.mark('s2')
    k('s_barrier')
    k.mark('bar0')
    for x in reads(0): k(x)
    for n in range(16):
        k('s_waitcnt lgkmcnt(0)')
        mem = []
        if n % 2 == 1 and n < 15: k('s_barrier')
        if n < 15: mem += reads(n + 1)
        va = stats(n)
        if n == 15: va += final
        fs = F[n % 2]
        total = len(mem) + len(va); done = 0
        for i in range(28):
            blk, b = divmod(i, 4)
            cin = '0' if n == 0 else v(acc(blk, b), 4)
            k(f'v_mfma_f32_16x16x32_bf16 {v(acc(blk,b),4)}, {v(fs+4*blk,4)}, {v(fs+28+4*b,4)}, {cin}')
            want = (total * (i + 1) + 27) // 28
            first = True
            while done < want:
                if mem and (first or not va): k(mem.pop(0))
                else: k(va.pop(0))
                first = False; done += 1
        assert not mem and not va
    k.mark('t1')
    k('s_waitcnt lgkmcnt(0)\ns_barrier')
    S = 16; R2 = 24; C = 32; T = 48; P = 64
    for b in range(4): k(f'ds_read_b64 v[{S+2*b}:{S+2*b+1}], v{10 if b < 2 else 13} offset:{128*(b%2)}')
    k(f'ds_read_b128 {v(C,4)}, v11\nds_read_b128 {v(C+4,4)}, v11 offset:64')
    k(f's_mov_b32 s27, {NLOG2E}\ns_waitcnt lgkmcnt(2)')
    for b in range(4): k(f'v_mul_f32 v{R2+2*b}, s27, v{S+2*b+1}')
    for blk in range(7):
        c = C + 8 * (blk % 2)
        k('s_waitcnt lgkmcnt(0)')
        if blk < 6:
            cn = C + 8 * ((blk + 1) % 2)
            k(f'ds_read_b128 {v(cn,4)}, v11 offset:{128*(blk+1)}\nds_read_b128 {v(cn+4,4)}, v11 offset:{128*(blk+1)+64}')
        for b in range(4):
            A_ = acc(blk, b); t = T + 4*b
            k(f'v_pk_fma_f32 {v(t,2)}, {v(S+2*b,2)}, {v(c,2)}, {v(A_,2)} op_sel_hi:[0,1,1]')
            k(f'v_pk_fma_f32 {v(t+2,2)}, {v(S+2*b,2)}, {v(c+2,2)}, {v(A_+2,2)} op_sel_hi:[0,1,1]')
        for b in range(4):
            t = T + 4*b
            k(f'v_pk_fma_f32 {v(t,2)}, {v(R2+2*b,2)}, {v(t,2)}, {v(c+4,2)} op_sel_hi:[0,1,1]')
            k(f'v_pk_fma_f32 {v(t+2,2)}, {v(S+2*b,2)}, {v(t+2,2)}, {v(c+6,2)} op_sel:[1,0,0] op_sel_hi:[1,1,1]')
        for b in range(4):
            t = T + 4*b
            k(f'v_exp_f32 v{t}, v{t}\nv_exp_f32 v{t+1}, v{t+1}')
        for b in range(4):
            t = T + 4*b
            k(f'v_pk_add_f32 {v(t,2)}, {v(t,2)}, 1.0 op_sel_hi:[1,0]')
        for b in range(4):
            t = T + 4*b
            k(f'v_rcp_f32 v{t}, v{t}\nv_rcp_f32 v{t+1}, v{t+1}')
        for b in range(4):
            t = T + 4*b
            k(f'v_pk_mul_f32 {v(t,2)}, {v(t,2)}, {v(t+2,2)}')
        for b in range(4):
            t = T + 4*b
            k(f'v_cvt_pk_bf16_f32 v{P+8*b+blk}, v{t}, v{t+1}')
        if blk == 3:
            for b in range(4):
                k(f'buffer_store_dwordx4 {v(P+8*b,4)}, v12, s[8:11], s{32+b} offen {SC}')
        if blk == 6:
            for b in range(4):
                k(f'buffer_store_dwordx3 {v(P+8*b+4,3)}, v15, s[8:11], s{32+b} offen offset:1024 {SC}')
    k('s_branch L_g_join')

    CL = 64
    NB = O.get('nb', 4)
    k(f'''L_g_loader:
    s_sub_u32 s18, s3, 4
    s_mul_i32 s19, s17, {16*14*1024}
    v_mov_b32 v1, 0xffff0000
    v_lshlrev_b32 v6, 1, v4
    v_xor_b32 v6, v6, v3
    v_lshlrev_b32 v6, 4, v6
    v_lshl_add_u32 v7, v4, 12, v6
    v_xor_b32 v8, 128, v7
    s_mul_i32 s20, s18, {7*1024}
    s_lshl_b32 s21, s18, 16
    s_lshl_b32 s22, s16, 8
    s_add_u32 s21, s21, s22
    s_lshl_b32 s22, s18, 12
    s_add_u32 s22, s22, {BOFF}
    s_add_u32 s26, s4, s19
    s_addc_u32 s27, s5, 0
    v_and_b32 v9, 31, v2''')
    k.srd(32, 26, 16 * 14 * 1024, WP)
    k.srd(12, 4, 512 * 4096, X1T)
    k.srd(28, 4, 16 * 224 * 128, CSB)
    k(f'''v_min_u32 v9, 27, v9
    s_mul_i32 s25, s18, 28
    v_add_u32 v9, s25, v9
    v_lshlrev_b32 v10, 4, v9
    v_lshrrev_b32 v11, 5, v2
    v_mul_u32_u24 v11, {8*224*128}, v11
    v_add_u32 v11, v11, v10
    s_mul_i32 s25, s17, {14*128}
    v_mov_b32 v16, s60''')
    def dmaA(st):
        sl = (st % 3) * SLOT
        k(f's_add_u32 m0, s20, {sl}\ns_add_u32 s23, s20, {st*BOFF}')
        for i in range(4): k(f'buffer_load_dwordx4 v12, s[32:35], s23 offen offset:{1024*i} {SCI} lds')
        k(f's_add_u32 m0, s20, {sl+4096}\ns_add_u32 s23, s20, {st*BOFF+4096}')
        for i in range(3): k(f'buffer_load_dwordx4 v12, s[32:35], s23 offen offset:{1024*i} {SCI} lds')
    def dmaB(st):
        sl = (st % 3) * SLOT
        for i in range(4):
            k(f's_add_u32 m0, s22, {sl+1024*i}\ns_add_u32 s24, s21, {st*64*4096 + 4*4096*i}')
            k(f'buffer_load_dwordx4 v{7 + i//2}, s[12:15], s24 offen {SCI} lds')
    def dma(st):
        dmaB(st); dmaA(st)
    k(f'''s_lshl_b32 s23, s17, 4
    v_add_u32 v17, s23, v3
    v_and_b32 v18, 31, v2
    v_lshl_add_u32 v18, v18, 3, s51
    v_cmp_gt_u32 vcc, 32, v2
    v_cndmask_b32 v17, v18, v17, vcc
    v_lshlrev_b32 v17, 7, v17
    v_add_u32 v17, {SWF}, v17
    s_mov_b32 s61, 0x40000
    L_e2_poll:
    global_load_dword v18, v17, s[4:5] {SC}
    s_waitcnt vmcnt(0)
    v_cmp_ne_u32 vcc, v16, v18
    s_cbranch_vccz L_e2_ok
    s_mov_b64 exec, vcc
    s_sleep {O.get('sle', 4)}
    s_sub_u32 s61, s61, 1
    s_cbranch_scc0 L_e2_poll
    L_e2_ok:
    s_mov_b64 exec, -1''')
    k.mark('e2')
    dmaA(0); dmaA(1); dmaA(2)
    for i in range(NB):
        for x in wd_loads(i): k(x)
    k('s_barrier')
    k.mark('s2')
    def wd_dma(dl):
        for q in range(2):
            k(f's_add_u32 m0, s37, {WDL(dl) + 4096*q}\ns_add_u32 s23, s36, {dl*32*UB + 4096*q}')
            for i in range(4 - q): k(f'buffer_load_dwordx4 v12, s[44:47], s23 offen offset:{1024*i} {SCI} lds')
    k(f'''s_mul_i32 s36, s51, {4*32*UB}
    s_mul_i32 s37, s18, {4*UB}
    s_add_u32 s36, s36, s37''')
    dmaB(0); dmaB(1); dmaB(2)
    for st in range(8):
        k(f's_waitcnt vmcnt({[8, 4, 11, 19, 11, 11, 11, 7][st]})\ns_barrier')
        if st == 0: k.mark('bar0')
        if 1 <= st <= 5: dma(st + 2)
        if st == 2:
            for i in range(8):
                k(f'buffer_load_dwordx4 {v(CL+4*i,4)}, v11, s[28:31], s25 offen {SCI}\ns_add_u32 s25, s25, {224*128}')
        if st == 5:
            for i in range(1, 8):
                for e in range(4): k(f'v_add_f32 v{CL+e}, v{CL+e}, v{CL+4*i+e}')
            for e in range(4): k(f'v_mov_b32 v{CL+4+e}, v{CL+e}')
            for e in range(4): k(f'v_permlane32_swap_b32 v{CL+e}, v{CL+4+e}')
            for e in range(4): k(f'v_add_f32 v{CL+e}, v{CL+e}, v{CL+4+e}')
            k(f'''v_and_b32 v{CL+4}, 4, v9
            v_cmp_eq_u32 vcc, 0, v{CL+4}
            v_mov_b32 v{CL+5}, {NLOG2E}
            v_cndmask_b32 v{CL+5}, v{CL+5}, 1.0, vcc
            v_mul_f32 v{CL}, v{CL}, v{CL+5}
            v_mul_f32 v{CL+1}, v{CL+1}, v{CL+5}
            v_add_u32 v10, {CONST}, v10
            ds_write_b128 v10, {v(CL,4)}
            s_waitcnt lgkmcnt(0)''')
        if st == 6: wd_dma(0)
        if st == 7: wd_dma(1); wd_dma(2)
    k('s_barrier')
    k.mark('t1')
    wd_dma(3)
    for i in range(NB, 8):
        for x in wd_loads(i): k(x)

    ACC2 = 16; RING = 80
    k('L_g_join:')
    k.mark('join')
    k.srd(12, 4, 0x8000, FLG + 0x18000)
    k(f'''s_mul_i32 s19, s50, {4*32*UB}
    s_mul_i32 s18, s3, {4*UB}
    s_add_u32 s19, s19, s18''')
    for tl in range(4):
        k(f's_add_u32 s21, s3, {tl}\ns_and_b32 s21, s21, 3\ns_mul_i32 s21, s21, {32*UB}\ns_add_u32 s{24+tl}, s19, s21')
    k(f'''
    s_lshl_b32 s21, s16, 11
    s_lshl_b32 s22, s17, 7
    s_add_u32 s21, s21, s22
    v_lshl_add_u32 v6, v2, 2, s21
    s_lshr_b32 s21, s50, 1
    s_lshl_b32 s21, s21, 11
    v_lshl_add_u32 v7, v3, 7, s21
    v_mov_b32 v8, s60''')
    for i in (1, 3, 5, 7):
        for dl in range(4): k(f'v_mov_b32 v{WDR+16*i+4*dl+3}, 0')
    k('s_waitcnt vmcnt(0)')
    k.mark('hhdrain')
    k('s_barrier')
    k.mark('pre3')
    for j in range(12): k(f'v_mov_b32 v{RING+4*j+3}, 0')
    k(f'''s_cmp_ge_u32 s3, 4
    s_cbranch_scc1 L_g_sig
    s_mul_i32 s21, s3, {4*UB}
    v_add_u32 v10, s21, v12
    v_add_u32 v11, s21, v15
    v_add_u32 v13, {2*SLOT}, v10
    v_add_u32 v14, {2*SLOT}, v11''')
    for i in range(8):
        u, kind = divmod(i, 2)
        for dl in range(4):
            r = WDR + 16 * i + 4 * dl; o = WDL(dl) % (2 * SLOT) + u * UB + 1024 * kind
            a4, a3 = (13, 14) if dl < 2 else (10, 11)
            if kind == 0: k(f'ds_read_b128 {v(r,4)}, v{a4} offset:{o}')
            else: k(f'ds_read_b32 v{r}, v{a3} offset:{o}\nds_read_b32 v{r+1}, v{a3} offset:{o+4}\nds_read_b32 v{r+2}, v{a3} offset:{o+8}')
    k(f'''s_waitcnt lgkmcnt(0)
    s_branch L_g_go
    L_g_sig:
    s_cmp_lg_u32 s3, 4
    s_cbranch_scc1 L_g_go
    s_mov_b64 exec, 0xffffffff
    buffer_store_dword v8, v6, s[12:15], 0 offen {SC}
    s_mov_b64 exec, -1
    s_mov_b32 s21, 0x100000
    L_g_poll:
    buffer_load_dword v9, v7, s[12:15], 0 offen {SC}
    s_waitcnt vmcnt(0)
    v_cmp_ne_u32 vcc, v8, v9
    s_cbranch_vccz L_g_go
    s_sleep 2
    s_sub_u32 s21, s21, 1
    s_cbranch_scc0 L_g_poll
    L_g_go:
    s_barrier''')
    k.mark('s3')
    def hh_loads(i):
        u, kind = divmod(i, 2)
        r = RING + 16 * (i % 3)
        if i and kind == 0:
            for tl in range(4): k(f's_add_u32 s{24+tl}, s{24+tl}, {UB}')
        for tl in range(4):
            if kind == 0: k(f'buffer_load_dwordx4 {v(r+4*tl,4)}, v12, s[8:11], s{24+tl} offen {SC}')
            else: k(f'buffer_load_dwordx3 {v(r+4*tl,3)}, v15, s[8:11], s{24+tl} offen offset:1024 {SC}')
    for i in range(3): hh_loads(i)
    k.srd(32, 4, 512 * 4096, X1T)
    k.srd(36, 4, 4 * 3072 * 4 - 5 * 2048, MODP + 5 * 2048)
    k.srd(40, 6, 2048 * 1024)
    k(f'''s_lshr_b32 s18, s3, 2
    s_and_b32 s19, s3, 3
    s_lshl_b32 s20, s51, 1
    s_add_u32 s20, s20, s18
    s_lshl_b32 s21, s50, 2
    s_add_u32 s21, s21, s19
    v_lshlrev_b32 v6, 15, v4
    v_lshl_add_u32 v6, v3, 1, v6
    s_lshl_b32 s22, s20, 17
    s_lshl_b32 s23, s21, 5
    s_add_u32 s22, s22, s23
    v_lshlrev_b32 v7, 5, v4
    s_lshl_b32 s23, s20, 7
    v_lshlrev_b32 v10, 10, v3
    v_lshl_add_u32 v10, v4, 4, v10
    s_lshl_b32 s28, s21, 14
    s_lshl_b32 s29, s20, 6
    s_add_u32 s28, s28, s29''')
    XF = WDR; GB = WDR + 16
    for i in range(8):
        r = RING + 16 * (i % 3)
        younger = 4 * (min(8, i + 3) - i - 1) + (8 if 1 <= i <= 5 else 0)
        for tl in range(4):
            k(f's_waitcnt vmcnt({younger + 3 - tl})')
            for dl in range(4):
                a_ = ACC2 + 4 * (4 * dl + tl)
                cin = '0' if i == 0 else v(a_, 4)
                k(f'v_mfma_f32_16x16x32_bf16 {v(a_,4)}, {v(WDR+16*i+4*dl,4)}, {v(r+4*tl,4)}, {cin}')
        if i + 3 < 8: hh_loads(i + 3)
        if i == 0:
            for e in range(8): k(f'v_mov_b32 v{XF+e}, 0')
            for e in range(8): k(f'buffer_load_short_d16_hi v{XF+e}, v6, s[32:35], s22 offen {SCI}\ns_add_u32 s22, s22, 4096')
        if i == 2:
            for q in range(4):
                k(f'buffer_load_dwordx4 {v(GB+8*q,4)}, v7, s[36:39], s23 offen {SCI}\nbuffer_load_dwordx4 {v(GB+8*q+4,4)}, v7, s[36:39], s23 offen offset:16 {SCI}\ns_add_u32 s23, s23, {3072*4}')
    k.mark('g2')
    for pl in range(2):
        for tl in range(4):
            if pl == 0 and tl == 0: continue
            k(f'''s_add_u32 s29, s3, {tl}
            s_and_b32 s29, s29, 3
            s_xor_b32 s30, s18, {pl}
            s_lshl_b32 s30, s30, 2
            s_add_u32 s29, s29, s30
            s_mul_i32 s29, s29, 14336
            v_add_u32 v9, s29, v12''')
            for e in range(2):
                k(f'ds_write_b128 v9, {v(ACC2+4*(4*(2*pl+e)+tl),4)} offset:{(4*pl+tl-1)*2048 + 1024*e}')
    k(f's_mul_i32 s29, s3, 14336\nv_add_u32 v9, s29, v12\ns_waitcnt lgkmcnt(0)\ns_barrier')
    k.mark('red')
    RD = WDR + 48
    for e in range(8): k(f'v_add_f32 v{GB+e}, v{GB+e}, v{GB+8+e}\nv_add_f32 v{GB+16+e}, v{GB+16+e}, v{GB+24+e}')
    for e in range(8): k(f'v_add_f32 v{GB+e}, v{GB+e}, v{GB+16+e}')
    for j in range(4): k(f'v_cvt_pk_bf16_f32 v{GB+8+j}, v{GB+2*j}, v{GB+2*j+1}')
    for j in range(4): k(f'v_lshlrev_b32 v{GB+2*j}, 16, v{GB+8+j}\nv_and_b32 v{GB+2*j+1}, v1, v{GB+8+j}')
    for i in range(14): k(f'ds_read_b128 {v(RD+4*i,4)}, v9 offset:{1024*i}')
    for i in range(14):
        k(f's_waitcnt lgkmcnt({13-i})')
        e = i % 2
        for q in range(4): k(f'v_add_f32 v{ACC2+16*e+q}, v{ACC2+16*e+q}, v{RD+4*i+q}')
    k('s_waitcnt vmcnt(0)')
    for e in range(2):
        for q in range(4):
            k(f'v_fma_f32 v{XF+4*e+q}, v{ACC2+16*e+q}, v{GB+4*e+q}, v{XF+4*e+q}')
    for j in range(4): k(f'v_cvt_pk_bf16_f32 v{RING+j}, v{XF+2*j}, v{XF+2*j+1}')
    k(f'buffer_store_dwordx4 {v(RING,4)}, v10, s[40:43], s28 offen')
```

```python
from asmgen import *
from layout import *
from sched import mfma_stream
from k1 import cmul
import k34

SC = 'sc1'
UVS = 544
UVCH = 64 * UVS
KT = 2 * UVCH; KTCH = 7680
KC = 85248; KCS = 4160; KCH = 4 * KCS
HB = KC + 2 * KCH; HCH = 4608
XS = HB + 2 * HCH
WT = XS + 8192
MODS = WT + 8 * 4096
LNS = 2048 + 64
EX = 0
LDS_BYTES = 163840
WT = WT - 8192; XS = 16384; WDT = WT + 16384; MODS = WDT + 7168; ECNT = MODS + 192
GCNT = MODS + 200
LNT = WT; MRED = LNT + 8 * LNS
assert MODS + 256 <= LDS_BYTES and MRED + 2048 <= MODS
S1F = FLG + 0x8000; S2F = FLG + 0x10000; SWF = FLG + 0x20000
MIMIC_X1 = True
NT = ''

def poll_all(k, name, flag_off, vtag, vaddr, tmp, sleep):
    k(f'''v_lshlrev_b32 v{vaddr}, 9, v2
    v_add_u32 v{vaddr}, {flag_off}, v{vaddr}
    s_mov_b32 s61, 0x40000
    L_{name}_poll:
    global_load_dword v{tmp}, v{vaddr}, s[4:5] {SC}
    global_load_dword v{tmp+1}, v{vaddr}, s[4:5] offset:128 {SC}
    global_load_dword v{tmp+2}, v{vaddr}, s[4:5] offset:256 {SC}
    global_load_dword v{tmp+3}, v{vaddr}, s[4:5] offset:384 {SC}
    s_waitcnt vmcnt(0)
    v_xor_b32 v{tmp}, v{vtag}, v{tmp}
    v_xor_b32 v{tmp+1}, v{vtag}, v{tmp+1}
    v_xor_b32 v{tmp+2}, v{vtag}, v{tmp+2}
    v_xor_b32 v{tmp+3}, v{vtag}, v{tmp+3}
    v_or3_b32 v{tmp}, v{tmp}, v{tmp+1}, v{tmp+2}
    v_or_b32 v{tmp}, v{tmp}, v{tmp+3}
    v_cmp_ne_u32 vcc, 0, v{tmp}
    s_cbranch_vccz L_{name}_ok
    s_mov_b64 exec, vcc
    s_sleep {sleep}
    s_sub_u32 s61, s61, 1
    s_cbranch_scc0 L_{name}_poll
    L_{name}_ok:
    s_mov_b64 exec, -1''')

def wait_all(k, name, flag_off, go_off, vtag, vaddr, tmp, sleep, master):
    if not master:
        poll_all(k, name, flag_off, vtag, vaddr, tmp, sleep)
        return
    k(f's_cmp_lg_u32 s2, 0\ns_cbranch_scc1 L_{name}_slave')
    poll_all(k, name, flag_off, vtag, vaddr, tmp, 1)
    k(f's_mov_b32 s61, {go_off}')
    signal(k, 61, vtag, vaddr)
    k(f'''s_branch L_{name}_done
    L_{name}_slave:
    v_mov_b32 v{vaddr}, {go_off}
    s_mov_b32 s61, 0x40000
    L_{name}_gpoll:
    global_load_dword v{tmp}, v{vaddr}, s[4:5] {SC}
    s_waitcnt vmcnt(0)
    v_cmp_ne_u32 vcc, v{vtag}, v{tmp}
    s_cbranch_vccz L_{name}_done
    s_sleep 2
    s_sub_u32 s61, s61, 1
    s_cbranch_scc0 L_{name}_gpoll
    L_{name}_done:''')

def signal(k, flag_off_sgpr, vtag, tmp):
    k(f'''v_lshl_add_u32 v{tmp}, v2, 2, s{flag_off_sgpr}
    s_mov_b64 exec, 0xffffffff
    global_store_dword v{tmp}, v{vtag}, s[4:5] {SC}
    s_mov_b64 exec, -1''')

DEF_MARKS = ('b1', 'b3', 's1', 'hbar', 'p2end', 's2', 'bar0', 't1', 's3')
def build(diag=False, opts=(), marks=DEF_MARKS):
    k = Kernel('adaLN_cond__ssm_conv_s4__glu_gated_glu__prompt_kernel', 256, 512, LDS_BYTES, vgpr=256, sgpr=100 if diag else 64)
    k.diag = diag; k.marks = marks
    O = dict(x if isinstance(x, tuple) else (x, True) for x in opts)
    WPOS = O.get('wpos', 'kc'); NT = O.get('nt', 'nt'); NTC = O.get('ntc', 'nt'); NTP = O.get('ntp', 'nt')
    if diag:
        for i in range(72, 92): k(f's_mov_b32 s{i}, 0')
    k.stamp(0)
    pU, pAre, pLdt = 16, 18, 30
    pDsk, pWg, pWu, pWd, pC, pWm, pOut = 32, 36, 38, 40, 42, 44, 46
    XR = 16; WM = 20; CV = 28; P = 30
    TAG = 15
    k(f'''
    s_cmp_ge_u32 s2, 256
    s_cbranch_scc1 L_end
    s_load_dwordx16 s[16:31], s[0:1], 0
    s_load_dwordx16 s[32:47], s[0:1], 64
    s_load_dwordx2 s[4:5], s[0:1], {KA['ws']}
    s_cmp_ge_u32 s2, {O.get('ncpf', 16)}
    s_cbranch_scc1 L_nocpf
    s_getpc_b64 s[54:55]
    L_cpf_pc:
    v_lshlrev_b32 v56, 6, v0
    v_min_u32 v56, L_end-L_cpf_pc, v56
    global_load_dword v123, v56, s[54:55]
    L_nocpf:
    v_lshrrev_b32 v1, 6, v0
    v_and_b32 v2, 63, v0
    v_readfirstlane_b32 s3, v1
    v_lshlrev_b32 v12, 4, v2
    s_and_b32 s48, s2, 7
    s_lshl_b32 s48, s48, 5
    s_lshr_b32 s49, s2, 3
    s_add_u32 s48, s48, s49
    s_lshl_b32 s48, s48, 1
    s_lshr_b32 s49, s3, 2
    s_add_u32 s48, s48, s49
    s_lshl_b32 s50, s2, 3
    s_add_u32 s50, s50, s3
    s_lshl_b32 s50, s50, 10
    v_add_u32 v5, s50, v12
    s_min_u32 s51, s2, 191
    s_and_b32 s52, s51, 3
    s_lshr_b32 s53, s51, 2
    s_lshl_b32 s54, s52, 7
    s_lshl_b32 s55, s3, 4
    s_add_u32 s54, s54, s55
    v_lshrrev_b32 v3, 3, v2
    v_add_u32 v3, s54, v3
    v_and_b32 v4, 7, v2
    v_mul_u32_u24 v6, 6144, v3
    v_lshl_add_u32 v6, v4, 4, v6
    s_lshl_b32 s54, s53, 7
    v_add_u32 v6, s54, v6
    v_add_u32 v7, {8*6144}, v6
    v_lshlrev_b32 v8, 1, v3
    v_and_b32 v9, 127, v0
    s_lshl_b32 s54, s48, 8
    v_lshl_add_u32 v10, v9, 1, s54
    s_lshl_b32 s54, s48, 1
    v_mov_b32 v11, s54''')
    for i in range(9): k(f'v_mov_b32 v{CV+i}, 0')
    k(f'''s_cmp_lt_u32 s2, 192
    s_cselect_b64 vcc, -1, 0
    v_cndmask_b32 v6, v5, v6, vcc
    v_cndmask_b32 v7, v5, v7, vcc
    s_waitcnt lgkmcnt(0)
    s_cselect_b32 s{pWm}, s{pWm}, s{pU}
    s_cselect_b32 s{pWm+1}, s{pWm+1}, s{pU+1}''')
    k.mark('karg')
    k(f'global_load_short_d16_hi v{P+6}, v11, s[{pLdt}:{pLdt+1}]')
    for i in range(6): k(f'global_load_short_d16_hi v{P+i}, v10, s[{pAre+2*i}:{pAre+2*i+1}] {NTP}')
    k(f'''global_load_dwordx4 {v(XR,4)}, v5, s[{pU}:{pU+1}] {NTC}
    global_load_short_d16_hi v{CV}, v8, s[{pC}:{pC+1}]
    global_load_short_d16_hi v{CV+1}, v8, s[{pC}:{pC+1}] offset:16
    global_load_dwordx4 {v(WM,4)}, v6, s[{pWm}:{pWm+1}] {NTC}
    global_load_dwordx4 {v(WM+4,4)}, v7, s[{pWm}:{pWm+1}] {NTC}
    s_add_u32 s62, s4, {FLG}
    s_addc_u32 s63, s5, 0
    s_load_dword s60, s[62:63], 0
    s_and_b32 s54, s48, -2
    s_lshl_b32 s54, s54, 1
    s_load_dword s59, s[{pDsk}:{pDsk+1}], s54
    s_mov_b64 s[6:7], s[{pOut}:{pOut+1}]
    v_mov_b32 v1, 0xffff0000
    v_mov_b32 v14, 0x3f803f80''')
    RW = 80
    def wloads(skip7=True):
        lab = k.label('now')
        if skip7: k(f's_cmp_eq_u32 s3, 7\ns_cbranch_scc1 {lab}')
        k(f'''global_load_dwordx4 {v(RW,4)}, v124, s[{pWg}:{pWg+1}] {NT}
        global_load_dwordx4 {v(RW+4,4)}, v124, s[{pWu}:{pWu+1}] {NT}
        global_load_dwordx4 {v(RW+8,4)}, v125, s[{pWd}:{pWd+1}] {NT}
        {lab}:''')
    k(f'''
    ; raw weights: item j = min(tid, 447): gate/up (row j/14, block j%14) -> v124 source, v126 LDS; w_down (row j>>3, chunk j&7) -> v125, v127
    s_lshr_b32 s54, s2, 4
    s_and_b32 s55, s2, 15
    s_mul_i32 s56, s55, {32*3584}
    s_mul_i32 s57, s54, 224
    s_add_u32 s56, s56, s57
    s_lshr_b32 s57, s2, 3
    s_mul_i32 s57, s57, {56*1024}
    s_and_b32 s58, s2, 7
    s_lshl_b32 s58, s58, 7
    s_add_u32 s57, s57, s58
    v_min_u32 v56, 447, v0
    v_mul_u32_u24 v57, 4682, v56
    v_lshrrev_b32 v57, 16, v57
    v_mul_u32_u24 v58, 14, v57
    v_sub_u32 v58, v56, v58
    v_mul_u32_u24 v124, 3584, v57
    v_lshl_add_u32 v124, v58, 4, v124
    v_add_u32 v124, s56, v124
    v_and_b32 v59, 3, v57
    v_bfe_u32 v60, v57, 3, 1
    v_lshl_or_b32 v59, v60, 2, v59
    v_xor_b32 v58, v58, v59
    v_lshlrev_b32 v58, 5, v58
    v_lshl_add_u32 v58, v57, 9, v58
    v_add_u32 v126, {WT}, v58
    v_lshrrev_b32 v57, 3, v56
    v_and_b32 v58, 7, v56
    v_lshlrev_b32 v125, 10, v57
    v_lshl_add_u32 v125, v58, 4, v125
    v_add_u32 v125, s57, v125
    v_lshlrev_b32 v56, 4, v56
    v_add_u32 v127, {WDT}, v56
''')
    WX = 0
    if WPOS == 'start': wloads(False); WX = 3
    GA = 40
    SAD = 52
    k(f'''v_and_b32 v13, 255, v0
    v_lshlrev_b32 v56, 3, v13
    v_sub_u32 v56, 2047, v56''')
    for e in range(12):
        k(f'v_subrev_u32 v{GA+e}, {e}, v56\nv_max_i32 v{GA+e}, 0, v{GA+e}\nv_cvt_f32_u32 v{GA+e}, v{GA+e}')
    for e in range(0, 12, 2):
        k(f'v_cvt_pk_bf16_f32 v57, v{GA+e}, v{GA+e+1}\nv_lshlrev_b32 v{GA+e}, 16, v57\nv_and_b32 v{GA+e+1}, v1, v57')
    k(f's_mul_i32 s54, s49, {KTCH}\ns_add_u32 s54, s54, {KT}')
    for e in range(12):
        k(f'''v_cvt_u32_f32 v{GA+e}, v{GA+e}
        v_lshrrev_b32 v57, 3, v{GA+e}
        v_lshl_add_u32 v{GA+e}, v57, 1, v{GA+e}
        v_lshl_add_u32 v{GA+e}, v{GA+e}, 1, s54''')
    k(f'''v_lshrrev_b32 v4, 4, v2
    v_and_b32 v3, 15, v2
    s_and_b32 s55, s3, 3
    s_cmp_eq_u32 s55, 1
    s_cbranch_scc1 L_sa1
    s_cmp_eq_u32 s55, 2
    s_cbranch_scc1 L_sa2
    v_and_b32 v56, 1, v4
    v_lshrrev_b32 v57, 1, v4
    v_lshlrev_b32 v56, 2, v56
    v_lshl_add_u32 v56, v57, 7, v56''')
    for r in range(4): k(f'v_add_u32 v{SAD+r}, {r}, v56')
    k(f'''s_branch L_sa_done
    L_sa1:
    v_cmp_gt_u32 vcc, 2, v4
    v_lshlrev_b32 v56, 7, v4
    v_add_u32 v56, 256, v56
    v_lshlrev_b32 v57, 8, v4
    v_cndmask_b32 v56, v57, v56, vcc''')
    for r in range(4):
        k(f'v_mov_b32 v57, {4*(r&1) + 128*(r>>1)}\nv_mov_b32 v58, {2*r}\nv_cndmask_b32 v57, v57, v58, vcc\nv_add_u32 v{SAD+r}, v56, v57')
    k(f'''s_branch L_sa_done
    L_sa2:
    v_lshlrev_b32 v56, 9, v4
    v_add_u32 v56, 1024, v56''')
    for r in range(4): k(f'v_add_u32 v{SAD+r}, {128*r}, v56')
    k('L_sa_done:')
    k(f'v_mul_u32_u24 v56, 20, v3\nv_add_u32 v56, s54, v56')
    for r in range(4):
        k(f'''v_lshrrev_b32 v57, 3, v{SAD+r}
        v_lshl_add_u32 v{SAD+r}, v57, 1, v{SAD+r}
        v_lshl_add_u32 v{SAD+r}, v{SAD+r}, 1, v56''')
    k.mark('addr')
    CB = 56; TMP = 58
    k(f's_waitcnt vmcnt({5+WX})')
    k.mark('pin')
    k(f'''
    s_mul_i32 s54, s49, {UVCH}
    v_lshl_add_u32 v9, v9, 2, s54
    v_mad_u32_u24 v11, v3, {UVS // 16}, v4
    v_lshl_add_u32 v11, v11, 4, s54
    s_mov_b32 s54, {LOG2E}
    s_mov_b32 s55, {INV2PI}
    v_mul_f32 v{P+6}, s54, v{P+6}
    v_exp_f32 v{P+6}, v{P+6}
    v_cvt_pk_bf16_f32 v{P+6}, v{P+6}, v{P+6}
    v_and_b32 v{P+6}, v1, v{P+6}
    v_mul_f32 v{P}, v{P}, v{P+6}
    v_mul_f32 v{P+1}, v{P+1}, v{P+6}
    v_mul_f32 v{P+2}, v{P+2}, v{P+6}
    v_mul_f32 v{P+3}, v{P+3}, v{P+6}
    v_mul_f32 v{P}, s54, v{P}
    v_mul_f32 v{P+1}, s55, v{P+1}''')
    cmul(k, CB, CB+1, P+4, P+5, P+2, P+3, TMP)
    def direct(dst, l):
        lf = {1: '1.0', 4: '4.0', 8: '0x41000000', 128: '0x43000000', 512: '0x44000000'}[l]
        k(f'''v_mul_f32 v{TMP}, {lf}, v{P}
        v_mul_f32 v{TMP+1}, {lf}, v{P+1}
        v_exp_f32 v{TMP}, v{TMP}
        v_fract_f32 v{TMP+1}, v{TMP+1}
        v_cos_f32 v{dst}, v{TMP+1}
        v_sin_f32 v{dst+1}, v{TMP+1}
        v_mul_f32 v{dst}, v{dst}, v{TMP}
        v_mul_f32 v{dst+1}, v{dst+1}, v{TMP}''')
    cnt = [0]
    def put(row, zr, neg=False):
        t = 62 + (cnt[0] % 4); cnt[0] += 1
        k(f'v_cvt_pk_bf16_f32 v{t}, v{zr}, {"-" if neg else ""}v{zr+1}\nds_write_b32 v9, v{t} offset:{row*UVS}')

    k(f's_bitcmp1_b32 s3, 1\ns_cbranch_scc1 L_halfB')
    E = 108; E128 = 66; Tk = 68; Z = 76
    def e(r): return E + 2*r
    direct(e(1), 1); direct(E128, 128)
    cmul(k, e(2), e(2)+1, e(1), e(1)+1, e(1), e(1)+1, TMP)
    cmul(k, Tk+2, Tk+3, CB, CB+1, E128, E128+1, TMP+2)
    cmul(k, e(3), e(3)+1, e(2), e(2)+1, e(1), e(1)+1, TMP)
    cmul(k, e(4), e(4)+1, e(2), e(2)+1, e(2), e(2)+1, TMP+2)
    cmul(k, Tk+4, Tk+5, Tk+2, Tk+3, E128, E128+1, TMP)
    cmul(k, e(5), e(5)+1, e(4), e(4)+1, e(1), e(1)+1, TMP+2)
    cmul(k, e(6), e(6)+1, e(4), e(4)+1, e(2), e(2)+1, TMP)
    cmul(k, e(7), e(7)+1, e(4), e(4)+1, e(3), e(3)+1, TMP+2)
    cmul(k, Tk+6, Tk+7, Tk+4, Tk+5, E128, E128+1, TMP)
    tk = [CB, Tk+2, Tk+4, Tk+6]
    rows = [(0, r) for r in range(8)] + [(1, r) for r in range(8)] + [(2, r) for r in (0,2,4,6)] + [(3, r) for r in (0,2,4,6)]
    for i, (kap, rho) in enumerate(rows):
        if rho == 0: put(i, tk[kap])
        else:
            z = Z + 2*(i % 2)
            cmul(k, z, z+1, tk[kap], tk[kap]+1, e(rho), e(rho)+1, TMP + 2*(i % 2))
            put(i, z)
    k('s_branch L_uv_done\nL_halfB:')
    E4 = 110; E8 = 112; E512 = 114; VA = 116; TA = 120
    direct(E8, 8); direct(E128, 128); direct(E512, 512); direct(E4, 4)
    k(f'v_mov_b32 v{VA}, 1.0\nv_mov_b32 v{VA+1}, 0')
    put(48, VA, True); put(49, E8, True)
    cmul(k, TA, TA+1, CB, CB+1, E512, E512+1, TMP)
    vprev = E8; tprev = TA
    for i in range(14):
        vn = VA + 2*(i % 2)
        cmul(k, vn, vn+1, vprev, vprev+1, E8, E8+1, TMP)
        put(50+i, vn, True); vprev = vn
        kap = 4 + i
        if kap <= 16:
            if kap < 8:
                put(24 + 2*(kap-4), tprev)
                cmul(k, Z, Z+1, tprev, tprev+1, E4, E4+1, TMP+2)
                put(25 + 2*(kap-4), Z)
            else:
                put(32 + kap - 8, tprev)
            if kap < 16:
                tn = TA + 2*((i+1) % 2)
                cmul(k, tn, tn+1, tprev, tprev+1, E128, E128+1, TMP+2)
                tprev = tn
    k('L_uv_done:')
    k.mark('uv')
    if 'prio' in O: k('s_setprio 2')
    k(f's_waitcnt vmcnt({4+WX})')
    k.mark('xin')
    k(f'''
    v_dot2_f32_bf16 v56, v{XR}, v14, 0
    v_dot2_f32_bf16 v57, v{XR}, v{XR}, 0''')
    for j in range(1, 4):
        k(f'v_dot2_f32_bf16 v56, v{XR+j}, v14, v56\nv_dot2_f32_bf16 v57, v{XR+j}, v{XR+j}, v57')
    U = 60
    for j in range(4): k(f'v_lshlrev_b32 v{U+2*j}, 16, v{XR+j}\nv_and_b32 v{U+2*j+1}, v1, v{XR+j}')
    k(f'''v_permlane32_swap_b32 v56, v57
    v_add_f32 v56, v56, v57
    v_mov_b32 v57, v56
    v_permlane16_swap_b32 v56, v57
    v_add_f32 v56, v56, v57''')
    for ror in (8, 4, 2, 1): k(f'v_add_f32_dpp v56, v56, v56 row_ror:{ror} row_mask:0xf bank_mask:0xf')
    k(f'''v_mul_f32 v56, 0x3b000000, v56
    v_mov_b32 v57, v56
    v_permlane32_swap_b32 v56, v57
    v_fma_f32 v57, -v56, v56, v57
    v_max_f32 v57, 0, v57
    v_cvt_pk_bf16_f32 v58, v57, v56
    v_and_b32 v56, v1, v58
    v_lshlrev_b32 v57, 16, v58
    v_add_f32 v57, 0x3727c5ac, v57
    v_cvt_pk_bf16_f32 v58, v57, v57
    v_and_b32 v57, v1, v58
    v_sqrt_f32 v57, v57
    v_cvt_pk_bf16_f32 v58, v57, v57
    v_and_b32 v57, v1, v58
    v_rcp_f32 v57, v57''')
    for e in range(8): k(f'v_sub_f32 v{U+e}, v{U+e}, v56')
    for j in range(4): k(f'v_cvt_pk_bf16_f32 v{68+j}, v{U+2*j}, v{U+2*j+1}')
    for j in range(4): k(f'v_lshlrev_b32 v{U+2*j}, 16, v{68+j}\nv_and_b32 v{U+2*j+1}, v1, v{68+j}')
    for e in range(8): k(f'v_mul_f32 v{U+e}, v{U+e}, v57')
    for j in range(4): k(f'v_cvt_pk_bf16_f32 v{68+j}, v{U+2*j}, v{U+2*j+1}')
    k(f's_mov_b32 s54, 0x05040100\ns_mov_b32 s55, 0x07060302\ns_mul_i32 s56, s3, {LNS}\ns_add_u32 s56, s56, {LNT}\nv_lshl_add_u32 v5, v2, 5, s56')
    for j in range(4):
        k(f'v_perm_b32 v{U+2*j}, v{XR+j}, v{68+j}, s54\nv_perm_b32 v{U+2*j+1}, v{XR+j}, v{68+j}, s55')
    k(f'ds_write_b128 v5, {v(U,4)}\nds_write_b128 v5, {v(U+4,4)} offset:16')
    k.mark('ln')
    A = 72
    k(f's_mov_b32 s54, 0xbfb8aa3b\ns_waitcnt vmcnt({2+WX})')
    for i in range(2): k(f'v_mul_f32 v{56+i}, s54, v{CV+i}')
    for i in range(2): k(f'v_exp_f32 v{56+i}, v{56+i}')
    for i in range(2): k(f'v_add_f32 v{56+i}, 1.0, v{56+i}')
    for i in range(2): k(f'v_rcp_f32 v{56+i}, v{56+i}')
    for i in range(2): k(f'v_mul_f32 v{56+i}, v{56+i}, v{CV+i}')
    k(f'v_cvt_pk_bf16_f32 v58, v56, v57\nv_lshlrev_b32 v{CV}, 16, v58\nv_and_b32 v{CV+1}, v1, v58')
    for i in range(2):
        k(f's_waitcnt vmcnt({1-i+WX})')
        if i == 1: k.mark('wmin')
        for j in range(4): k(f'v_lshlrev_b32 v{U+2*j}, 16, v{WM+4*i+j}\nv_and_b32 v{U+2*j+1}, v1, v{WM+4*i+j}')
        for e in range(8):
            k(f'v_mul_f32 v{A+e}, v{U+e}, v{CV}' if i == 0 else f'v_fmac_f32 v{A+e}, v{U+e}, v{CV+1}')
    for j in range(4): k(f'v_permlane32_swap_b32 v{A+j}, v{A+j+4}')
    for j in range(4): k(f'v_add_f32 v{A+j}, v{A+j}, v{A+j+4}')
    for j in range(2): k(f'v_permlane16_swap_b32 v{A+j}, v{A+j+2}')
    for j in range(2): k(f'v_add_f32 v{A+j}, v{A+j}, v{A+j+2}')
    for j in range(2): k(f'v_add_f32_dpp v{A+j}, v{A+j}, v{A+j} row_ror:8 row_mask:0xf bank_mask:0xf')
    k(f'''v_and_b32 v56, 7, v2
    v_lshlrev_b32 v56, 5, v56
    v_lshl_add_u32 v56, v4, 3, v56
    s_lshl_b32 s54, s3, 8
    s_add_u32 s54, s54, {MRED}
    v_add_u32 v56, s54, v56
    ds_write_b64 v56, v[{A}:{A+1}]
    ''')
    k.mark('modd')
    if 'prio' in O: k('s_setprio 0')
    k(f'''s_waitcnt lgkmcnt(0)
    v_mov_b32 v{TAG}, s60
    v_add_u32 v{TAG}, 1, v{TAG}
    s_add_u32 s60, s60, 1
    s_barrier''')
    k.mark('b1')
    FK = 128
    k('s_cmp_ge_u32 s3, 4\ns_cbranch_scc1 L_kmm')
    k(f'''v_bfe_u32 v56, v2, 2, 2
    v_mul_u32_u24 v56, {LNS}, v56
    v_and_b32 v57, 3, v2
    v_lshl_add_u32 v56, v57, 3, v56
    v_lshl_add_u32 v56, v4, 5, v56
    s_lshl_b32 s54, s3, 9
    s_add_u32 s54, s54, {LNT}
    v_add_u32 v56, s54, v56
    v_lshlrev_b32 v57, 2, v2
    v_add_u32 v58, {MRED}, v57''')
    for q in range(4):
        k(f'ds_read_b64_tr_b16 v[{60+4*q}:{61+4*q}], v56 offset:{128*q}\nds_read_b64_tr_b16 v[{62+4*q}:{63+4*q}], v56 offset:{128*q + 4*LNS}')
    for w in range(8): k(f'ds_read_b32 v{100+w}, v58 offset:{256*w}')
    k(f'''s_lshl_b32 s54, s2, 14
    s_lshl_b32 s55, s3, 12
    s_add_u32 s54, s54, s55
    s_add_u32 s54, s54, {ZX}
    v_add_u32 v59, s54, v12''')
    for q in range(4):
        k(f's_waitcnt lgkmcnt({14-2*q})\nglobal_store_dwordx4 v59, {v(60+4*q,4)}, s[4:5] offset:{1024*q} {SC}')
    k(f'''s_cmp_lg_u32 s3, 0
    s_cbranch_scc1 L_kmm
    s_cmp_ge_u32 s2, 192
    s_cbranch_scc1 L_kmm
    s_mul_i32 s54, s52, {3072*4}
    s_lshl_b32 s55, s53, 8
    s_add_u32 s54, s54, s55
    s_add_u32 s54, s54, {MODP}
    v_add_u32 v57, s54, v57
    s_waitcnt lgkmcnt(0)''')
    for st, n in ((1, 8), (2, 8), (4, 8)):
        for j in range(0, 8, 2*st): k(f'v_add_f32 v{100+j}, v{100+j}, v{100+j+st}')
    k(f'global_store_dword v57, v100, s[4:5] {SC}')
    k(f'''L_kmm:
    s_and_b32 s55, s3, 3
    s_cmp_eq_u32 s55, 3
    s_cbranch_scc1 L_b3
    s_mul_i32 s54, s55, {16*UVS}
    v_add_u32 v56, s54, v11''')
    for st in range(8):
        k(f'ds_read_b128 {v(FK+8*st,4)}, v56 offset:{64*st}\nds_read_b128 {v(FK+8*st+4,4)}, v11 offset:{48*UVS + 64*st}')
    for st in range(8):
        k(f's_waitcnt lgkmcnt({14-2*st})')
        k(f'v_mfma_f32_16x16x32_bf16 v[60:63], {v(FK+8*st,4)}, {v(FK+8*st+4,4)}, {"0" if st == 0 else "v[60:63]"}')
    k(f'''v_cvt_pk_bf16_f32 v64, v60, v61
    v_cvt_pk_bf16_f32 v65, v62, v63
    ds_write_b16 v{SAD}, v64
    ds_write_b16_d16_hi v{SAD+1}, v64
    ds_write_b16 v{SAD+2}, v65
    ds_write_b16_d16_hi v{SAD+3}, v65
    L_b3:
    s_cmp_ge_u32 s3, 4
    s_cbranch_scc1 L_b3b
    s_waitcnt vmcnt(0)
    L_b3b:
    s_waitcnt lgkmcnt(0)
    s_barrier
    s_cmp_lg_u32 s3, 3
    s_cbranch_scc1 L_nosig1
    s_lshl_b32 s54, s2, 7
    s_add_u32 s54, s54, {S1F}''')
    signal(k, 54, TAG, 96)
    k('L_nosig1:')
    k.mark('sig1')
    if WPOS == 'mid': wloads()
    k.mark('b3')
    D = 56
    for j in range(6): k(f'v_mov_b32 v{D+6+j}, 0')
    for j in range(6): k(f'ds_read_u16 v{D+j}, v{GA+2*j}\nds_read_u16_d16_hi v{D+6+j}, v{GA+2*j+1}')
    k(f'''s_mul_i32 s52, s49, {KCH}
    s_add_u32 s52, s52, {KC}
    s_mul_i32 s53, s49, {HCH}
    s_add_u32 s53, s53, {HB}
    s_and_b32 s54, s3, 3
    s_mul_i32 s54, s54, {KCS}
    s_add_u32 s54, s54, s52
    s_add_u32 s54, s54, 4096
    v_and_b32 v5, 1, v2
    v_lshl_add_u32 v5, v5, 4, s54
    v_add_u32 v6, s53, v12
    v_cmp_gt_u32 vcc, 32, v2
    v_mov_b32 v28, 0
    v_mov_b32 v29, 0
    v_mov_b32 v30, 0
    v_mov_b32 v31, 0
    v_cndmask_b32 v5, v5, v6, vcc
    ds_write_b128 v5, v[28:31]
    v_lshl_add_u32 v5, v13, 4, s52
    v_cmp_eq_u32 vcc, 255, v13
    s_waitcnt lgkmcnt(1)''')
    for j in range(6): k(f'v_or_b32 v{D+j}, v{D+j}, v{D+6+j}')
    k(f'v_cndmask_b32 v{D+4}, v{D+4}, 0, vcc\nv_cndmask_b32 v{D+5}, v{D+5}, 0, vcc')
    k(f'ds_write_b128 v5, {v(D,4)}')
    for j in range(4): k(f'v_alignbit_b32 v{68+j}, v{D+j+1}, v{D+j}, 16')
    k(f'ds_write_b128 v5, v[68:71] offset:{KCS}')
    for j in range(4): k(f'v_mov_b32 v{72+j}, v{D+j+1}')
    k(f'ds_write_b128 v5, v[72:75] offset:{2*KCS}')
    for j in range(4): k(f'v_alignbit_b32 v{76+j}, v{D+j+2}, v{D+j+1}, 16')
    k(f'ds_write_b128 v5, v[76:79] offset:{3*KCS}')
    k.mark('kc')
    if WPOS == 'kc': wloads()
    k(f'''s_and_b32 s54, s3, 3
    s_lshl_b32 s54, s54, 2
    s_lshr_b32 s56, 0x3517, s54
    s_and_b32 s56, s56, 15
    v_add_u32 v8, 1, v4
    v_and_b32 v8, 3, v8
    v_lshlrev_b32 v8, 3, v8
    v_lshl_add_u32 v8, v3, 5, v8
    s_lshl_b32 s56, s56, 9
    s_sub_u32 s56, s56, 512
    v_add_u32 v8, s56, v8
    s_and_b32 s57, s3, 1
    s_lshl_b32 s57, s57, 8
    s_add_u32 s58, s53, 512
    v_add_u32 v7, s58, v8
    v_add_u32 v11, 4, v3
    v_and_b32 v11, 15, v11
    v_sub_u32 v11, 2031, v11
    v_lshl_add_u32 v11, v4, 3, v11
    v_and_b32 v9, 3, v11
    v_lshrrev_b32 v11, 2, v11
    v_lshlrev_b32 v11, 3, v11
    v_mul_u32_u24 v9, {KCS}, v9
    v_add_u32 v11, v11, v9
    s_sub_u32 s54, s52, s57
    s_sub_u32 s54, s54, 3776
    v_add_u32 v11, s54, v11
    v_lshlrev_b32 v9, 4, v4
    v_lshl_add_u32 v9, v3, 5, v9
    s_sub_u32 s54, s53, s57
    s_add_u32 s54, s54, 288
    v_add_u32 v9, s54, v9
    s_lshl_b32 s54, s3, 11
    v_add_u32 v14, s54, v12
    v_lshrrev_b32 v6, 2, v2
    s_lshl_b32 s54, s3, 5
    v_add_u32 v6, s54, v6
    v_and_b32 v22, 3, v2
    v_lshrrev_b32 v23, 1, v22
    v_and_b32 v24, 1, v22
    v_mul_u32_u24 v25, {HCH}, v23
    v_add_u32 v25, {HB + 512}, v25
    v_lshlrev_b32 v26, 12, v23
    v_add_u32 v26, {XS}, v26
    v_cmp_eq_u32 vcc, 0, v24
    v_cndmask_b32 v10, v26, v25, vcc
    v_lshl_add_u32 v10, v6, 4, v10
    v_lshlrev_b32 v6, 14, v6
    v_lshl_add_u32 v6, v22, 4, v6
    s_and_b32 s54, s48, -2
    s_lshl_b32 s55, s54, 5
    s_add_u32 s55, s55, {ZX}
    v_add_u32 v6, s55, v6
    v_mul_u32_u24 v20, {3072*4}, v22
    v_lshrrev_b32 v21, 2, v3
    v_lshl_add_u32 v20, v21, 11, v20
    v_and_b32 v21, 1, v4
    v_lshl_add_u32 v20, v21, 2, v20
    s_lshl_b32 s54, s54, 2
    s_add_u32 s54, s54, {MODP}
    v_add_u32 v20, s54, v20
    v_lshrrev_b32 v21, 5, v2
    v_lshlrev_b32 v21, 11, v21
    v_and_b32 v22, 31, v2
    v_lshl_add_u32 v21, v22, 2, v21
    s_and_b32 s54, s2, 15
    s_lshl_b32 s54, s54, 7
    s_add_u32 s54, s54, {MODP + 3*2048}
    v_add_u32 v21, s54, v21
    s_cmp_lg_u32 s3, 7
    s_cbranch_scc1 L_b5''')
    wait_all(k, 's1', S1F, FLG + 0x1000, TAG, 56, 60, O.get('sl1', 3), O.get('m1', False))
    k('L_b5:\ns_waitcnt lgkmcnt(0)\ns_barrier')
    k.mark('s1')
    ZR = 24; FRW = 96
    k(f'''global_load_dword v36, v20, s[4:5] {SC}
    global_load_dwordx4 {v(ZR,4)}, v6, s[4:5] {SC}
    v_add_u32 v6, {16 << 14}, v6
    global_load_dwordx4 {v(ZR+4,4)}, v6, s[4:5] {SC}
    s_cmp_lg_u32 s3, 7
    s_cbranch_scc1 L_nomods''')
    for q in range(4):
        k(f'global_load_dword v{32+q}, v21, s[4:5] {SC}\nv_add_u32 v21, {3072*4}, v21')
    k(f'''v_lshlrev_b32 v23, 1, v22
    v_add_u32 v23, {MODS + 128}, v23
    v_lshlrev_b32 v22, 2, v22
    v_add_u32 v22, {MODS}, v22
    s_waitcnt vmcnt(0)
    v_add_f32 v32, v32, v33
    v_add_f32 v34, v34, v35
    v_add_f32 v32, v32, v34
    v_cvt_pk_bf16_f32 v33, v32, v32
    v_and_b32 v32, v1, v33
    v_add_f32 v32, 1.0, v32
    v_cvt_pk_bf16_f32 v32, v32, v32
    v_and_b32 v32, v1, v32
    s_mov_b64 exec, 0xffffffff
    ds_write_b16 v23, v33
    s_not_b64 exec, exec
    ds_write_b32 v22, v32
    s_mov_b64 exec, -1
    L_nomods:
    s_cmp_eq_u32 s3, 7
    s_cbranch_scc1 L_noraw
    s_waitcnt vmcnt(3)''')
    for j_ in range(4):
        k(f'ds_write2_b32 v126, v{RW+j_}, v{RW+4+j_} offset0:{2*j_} offset1:{2*j_+1}')
    k(f'''ds_write_b128 v127, {v(RW+8,4)}
    L_noraw:
    v_mov_b32 v56, {ECNT}
    v_mov_b32 v57, 0
    ds_write_b32 v56, v57
    s_lshl_b32 s55, s49, 4
    s_lshr_b32 s59, s59, s55
    s_lshl_b32 s59, s59, 16
    v_mov_b32 v55, s59
    s_lshl_b32 s55, s49, 12
    s_add_u32 s55, s55, {XS}
    v_add_u32 v13, s55, v8
    s_waitcnt vmcnt(2)
    v_add_f32_dpp v16, v36, v36 quad_perm:[1,0,3,2] row_mask:0xf bank_mask:0xf
    v_add_f32_dpp v16, v16, v16 quad_perm:[2,3,0,1] row_mask:0xf bank_mask:0xf
    v_cvt_pk_bf16_f32 v16, v16, v16
    v_and_b32 v16, v1, v16
    v_add_f32 v17, 1.0, v16
    v_cvt_pk_bf16_f32 v17, v17, v17
    v_and_b32 v17, v1, v17
    v_readlane_b32 s16, v16, 0
    v_readlane_b32 s17, v17, 4
    v_readlane_b32 s18, v16, 8
    v_readlane_b32 s19, v16, 16
    v_readlane_b32 s20, v17, 20
    v_readlane_b32 s21, v16, 24
    v_and_b32 v18, 3, v2
    v_cmp_eq_u32 s[22:23], 0, v18
    v_cmp_eq_u32 s[24:25], 2, v18
    v_mov_b32 v52, 0
    v_mov_b32 v53, 1.0
    v_mov_b32 v16, s16
    v_mov_b32 v17, s17
    v_mov_b32 v18, s19
    v_mov_b32 v19, s20
    v_cndmask_b32 v52, v52, v16, s[22:23]
    v_cndmask_b32 v53, v53, v17, s[22:23]
    v_cndmask_b32 v52, v52, v18, s[24:25]
    v_cndmask_b32 v53, v53, v19, s[24:25]
    s_cmp_eq_u32 s49, 0
    s_cselect_b32 s18, s18, s21
    v_mov_b32 v54, s18''')
    H = 56
    for q in range(2):
        k(f's_waitcnt vmcnt({1-q})')
        for j_ in range(4): k(f'v_lshlrev_b32 v{H+2*j_}, 16, v{ZR+4*q+j_}\nv_and_b32 v{H+2*j_+1}, v1, v{ZR+4*q+j_}')
        for e_ in range(8): k(f'v_fma_f32 v{H+e_}, v{H+e_}, v53, v52')
        for j_ in range(4): k(f'v_cvt_pk_bf16_f32 v{ZR+4*q+j_}, v{H+2*j_}, v{H+2*j_+1}')
        k(f'ds_write_b128 v10, {v(ZR+4*q,4)} offset:{256*q}')
    k('s_waitcnt lgkmcnt(0)\ns_barrier')
    k.mark('hbar')
    k(f'''s_min_u32 s54, s3, 6
    s_lshl_b32 s54, s54, 1
    v_bfe_u32 v56, v2, 2, 2
    v_and_b32 v57, 1, v4
    v_lshl_or_b32 v57, v57, 2, v56
    v_xor_b32 v57, s54, v57
    v_lshlrev_b32 v57, 5, v57
    v_lshl_add_u32 v56, v4, 3, v56
    v_lshl_add_u32 v56, v56, 9, v57
    v_and_b32 v57, 3, v2
    v_lshl_add_u32 v56, v57, 3, v56
    v_add_u32 v56, {WT}, v56
    v_xor_b32 v58, 32, v56
    ds_read_b64_tr_b16 v[{FRW}:{FRW+1}], v56
    ds_read_b64_tr_b16 v[{FRW+2}:{FRW+3}], v56 offset:2048
    ds_read_b64_tr_b16 v[{FRW+4}:{FRW+5}], v58
    ds_read_b64_tr_b16 v[{FRW+6}:{FRW+7}], v58 offset:2048
    v_bfe_u32 v58, v2, 3, 1
    s_and_b32 s55, s3, 1
    s_xor_b32 s56, s55, 1
    v_bfe_u32 v59, v2, 2, 1
    v_lshl_add_u32 v59, v4, 1, v59
    v_and_b32 v60, s56, v58
    v_lshl_add_u32 v60, v60, 3, v59
    v_lshl_add_u32 v58, v58, 3, v59
    s_lshl_b32 s55, s55, 12
    s_lshr_b32 s54, s3, 2
    s_lshl_b32 s54, s54, 6
    s_add_u32 s55, s55, s54
    s_bfe_u32 s54, s3, 0x10001
    s_lshl_b32 s54, s54, 3
    s_add_u32 s55, s55, s54
    s_add_u32 s55, s55, {WDT}
    v_lshl_add_u32 v57, v57, 4, s55
    v_lshl_add_u32 v58, v58, 7, v57
    v_lshl_add_u32 v60, v60, 7, v57
    ds_read_b64_tr_b16 v[104:105], v58
    ds_read_b64_tr_b16 v[106:107], v60 offset:2048
    s_and_b32 s54, s2, 7
    s_lshl_b32 s54, s54, 2
    s_lshr_b32 s55, s3, 1
    s_add_u32 s54, s54, s55
    s_lshl_b32 s54, s54, 5
    s_lshr_b32 s55, s2, 3
    s_add_u32 s54, s54, s55
    s_mul_i32 s54, s54, {k34.UB}
    s_add_u32 s54, s54, {WD}
    s_bitcmp1_b32 s3, 0
    s_cbranch_scc1 L_wd3
    v_add_u32 v57, s54, v12
    s_waitcnt lgkmcnt(0)
    global_store_dwordx4 v57, v[104:107], s[4:5] {SC}
    s_branch L_wd_done
    L_wd3:
    v_mul_u32_u24 v57, 12, v2
    v_add_u32 v57, s54, v57
    s_waitcnt lgkmcnt(0)
    global_store_dwordx3 v57, v[104:106], s[4:5] offset:1024 {SC}
    L_wd_done:''')
    k(f'''v_lshlrev_b32 v56, 5, v4
    v_add_u32 v56, {MODS}, v56
    v_lshlrev_b32 v57, 4, v4
    v_add_u32 v58, {MODS + 128}, v57
    ds_read_b128 v[60:63], v56
    ds_read_b128 v[64:67], v56 offset:16
    ds_read_b128 v[68:71], v58
    v_mov_b32 v72, 0x3f803f80
    v_mov_b32 v73, v72
    v_mov_b32 v74, v72
    v_mov_b32 v75, v72
    s_min_u32 s54, s3, 6
    s_mul_i32 s55, s2, {14*1024}
    s_lshl_b32 s56, s54, 11
    s_add_u32 s55, s55, s56
    s_add_u32 s55, s55, {WP}
    v_add_u32 v56, s55, v12
    s_and_b32 s55, s2, 15
    s_mul_i32 s55, s55, {224*128}
    s_lshr_b32 s56, s2, 4
    s_mul_i32 s56, s56, {14*128}
    s_add_u32 s55, s55, s56
    s_lshl_b32 s56, s54, 8
    s_add_u32 s55, s55, s56
    s_add_u32 s55, s55, {CSB}
    v_add_u32 v57, s55, v57
    s_waitcnt lgkmcnt(0)
    v_mfma_f32_16x16x32_bf16 v[20:23], {v(FRW,4)}, v[68:71], 0
    v_mfma_f32_16x16x32_bf16 v[28:31], {v(FRW+4,4)}, v[68:71], 0''')
    for j in range(8):
        k(f'''v_lshlrev_b32 v76, 16, v{FRW+j}
        v_and_b32 v77, v1, v{FRW+j}
        v_mul_f32 v76, v76, v{60+2*(j%4)}
        v_mul_f32 v77, v77, v{61+2*(j%4)}
        v_cvt_pk_bf16_f32 v{88+j}, v76, v77''')
    k(f'''global_store_dwordx4 v56, v[88:91], s[4:5] {SC}
    global_store_dwordx4 v56, v[92:95], s[4:5] offset:1024 {SC}
    v_mfma_f32_16x16x32_bf16 v[16:19], v[88:91], v[72:75], 0
    v_mfma_f32_16x16x32_bf16 v[24:27], v[92:95], v[72:75], 0
    v_lshl_add_u32 v57, v3, 6, v57
    v_cmp_eq_u32 s[22:23], 1, v3
    v_cmp_eq_u32 s[24:25], 2, v3
    v_cmp_eq_u32 s[26:27], 3, v3''')
    for q in range(4):
        k(f'v_cndmask_b32 v{32+q}, v{16+q}, v{20+q}, s[22:23]\nv_cndmask_b32 v{32+q}, v{32+q}, v{24+q}, s[24:25]\nv_cndmask_b32 v{32+q}, v{32+q}, v{28+q}, s[26:27]')
    k(f'''s_mov_b32 exec_lo, 0x000f000f
    s_mov_b32 exec_hi, 0x000f000f
    global_store_dwordx4 v57, v[32:35], s[4:5] {SC}
    s_mov_b64 exec, -1
    s_nop 1''')
    k.mark('prep')
    k(f'''s_bitcmp1_b32 s3, 1
    s_cbranch_scc1 L_set1''')
    ACC = 16
    slots = [32, 36, 40, 44, 48] + [56 + 4*i for i in range(18)]
    def conv_path(blocks):
        mf = []; fl = {}
        qmax = max(blocks)
        for m0 in (0, 2, 4, 6):
            for q in range(qmax + 1):
                fl[('A', m0, q)] = (lambda r, m0=m0, q=q: [f'ds_read_b64 v[{r}:{r+1}], v11 offset:{3776 - 32*m0 - 512*q}',
                                                           f'ds_read_b64 v[{r+2}:{r+3}], v11 offset:{3776 - 32*m0 - 512*q + 8}'])
                fl[('B', m0, q)] = (lambda r, m0=m0, q=q: [f'ds_read_b128 v[{r}:{r+3}], v9 offset:{192 - 32*m0 + 512*q}'])
            for q in range(qmax + 1):
                for bi, c in enumerate(blocks):
                    if q <= c: mf.append((ACC + 4*bi, ('A', m0, q), ('B', m0, c - q)))
        def extra(i):
            if i != O.get('epos', 40): return
            lab = k.label('noe')
            k(f'''s_waitcnt vmcnt(0)
            v_mov_b32 v5, {ECNT}
            v_mov_b32 v6, 1
            s_mov_b64 exec, 1
            ds_add_rtn_u32 v6, v5, v6
            s_mov_b64 exec, -1
            s_lshl_b32 s54, s2, 7
            s_add_u32 s54, s54, {SWF}
            s_waitcnt lgkmcnt(0)
            v_readfirstlane_b32 s55, v6
            s_cmp_lg_u32 s55, 7
            s_cbranch_scc1 {lab}''')
            signal(k, 54, TAG, 5)
            k(f'{lab}:')
        mfma_stream(k, mf, fl, slots, per_gap=2, pre=12, extra=extra)
    conv_path([7, 6, 1, 0])
    k('s_branch L_conv_done\nL_set1:')
    conv_path([5, 4, 3, 2])
    XE = 48
    k('L_conv_done:')
    k.mark('conv')
    k(f'''s_nop 7
    ds_read_b64 v[56:57], v7 offset:512
    ds_read_b64 v[58:59], v7
    ds_read_b64 v[{XE}:{XE+1}], v13 offset:512
    ds_read_b64 v[{XE+2}:{XE+3}], v13
    v_xor_b32 v5, 2048, v14
    s_bitcmp1_b32 s3, 0
    s_cbranch_scc1 L_mh1
    ds_write_b128 v14, v[24:27]
    ds_write_b128 v14, v[28:31] offset:1024
    s_branch L_sent
    L_mh1:
    ds_write_b128 v14, v[16:19]
    ds_write_b128 v14, v[20:23] offset:1024''')
    for j in range(8): k(f'v_mov_b32 v{16+j}, v{24+j}')
    HF = 60; XF = 68
    k(f'L_sent:\ns_waitcnt lgkmcnt(2)')
    for j in range(4):
        k(f'v_lshlrev_b32 v{HF+2*j}, 16, v{56+j}\nv_and_b32 v{HF+2*j+1}, v1, v{56+j}')
        k(f'v_lshlrev_b32 v{XF+2*j}, 16, v{XE+j}\nv_and_b32 v{XF+2*j+1}, v1, v{XE+j}')
    def rnd(base):
        for j in range(4): k(f'v_cvt_pk_bf16_f32 v{76+j}, v{base+2*j}, v{base+2*j+1}')
        for j in range(4): k(f'v_lshlrev_b32 v{base+2*j}, 16, v{76+j}\nv_and_b32 v{base+2*j+1}, v1, v{76+j}')
    if MIMIC_X1:
        for e_ in range(8): k(f'v_mul_f32 v{HF+e_}, v{HF+e_}, v55')
        rnd(HF)
    k(f'''s_lshl_b32 s54, s48, 12
    s_add_u32 s54, s54, {X1T}
    v_add_u32 v8, s54, v8
    s_waitcnt lgkmcnt(0)
    s_barrier
    ds_read_b128 v[24:27], v5
    ds_read_b128 v[28:31], v5 offset:1024
    s_cmp_lt_u32 s3, 4
    s_cbranch_scc1 L_noe2
    s_bfe_u32 s54, s2, 0x20001
    s_lshl_b32 s54, s54, 2
    s_lshr_b32 s55, s2, 6
    s_add_u32 s54, s54, s55
    s_lshl_b32 s54, s54, 4
    s_lshr_b32 s55, s2, 5
    v_add_u32 v80, s54, v3
    v_and_b32 v81, 31, v2
    v_lshl_add_u32 v81, v81, 3, s55
    v_cmp_gt_u32 vcc, 32, v2
    v_cndmask_b32 v80, v81, v80, vcc
    v_lshlrev_b32 v80, 7, v80
    v_add_u32 v80, {SWF}, v80
    global_load_dword v81, v80, s[4:5] {SC}
    L_noe2:
    s_waitcnt lgkmcnt(0)''')
    for e_ in range(8): k(f'v_add_f32 v{16+e_}, v{16+e_}, v{24+e_}')
    if MIMIC_X1:
        rnd(16)
        for e_ in range(8): k(f'v_add_f32 v{16+e_}, v{16+e_}, v{HF+e_}')
        rnd(16)
        for e_ in range(8): k(f'v_mul_f32 v{16+e_}, v{16+e_}, v54')
        rnd(16)
        for e_ in range(8): k(f'v_add_f32 v{16+e_}, v{16+e_}, v{XF+e_}')
    else:
        for e_ in range(8): k(f'v_fmac_f32 v{16+e_}, v{HF+e_}, v55')
        for e_ in range(8): k(f'v_fma_f32 v{16+e_}, v{16+e_}, v54, v{XF+e_}')
    for j in range(4): k(f'v_cvt_pk_bf16_f32 v{76+j}, v{16+2*j}, v{17+2*j}')
    k.mark('cepi')
    k(f'''global_store_dwordx2 v8, v[76:77], s[4:5] offset:512 {SC}
    global_store_dwordx2 v8, v[78:79], s[4:5] {SC}
    s_lshl_b32 s54, s2, 7
    s_add_u32 s54, s54, {S2F}
    s_waitcnt vmcnt(0)
    s_barrier
    s_cmp_lg_u32 s3, 1
    s_cbranch_scc1 L_nosig2''')
    signal(k, 54, TAG, 56)
    k('L_nosig2:')
    k.mark('p2end')
    k34.gemm_phases(k, tuple(opts) + ('fused2',), S2F=S2F, SWF=SWF, poll_all=wait_all, signal=signal)
    if 'dbg' in O: k.dump_debug(11)
    else: k.dump_stamps(11, DIAG)
    k('L_end:\ns_endpgm')
    return k
```

```python
from asmgen import *
from layout import *

SLOT = 45056; BOFF = 28672
CONST = 160768
STATF = CONST + 2048
K34_LDS = STATF + 1024
NLOG2E = 0xbfb8aa3b
XTL = 147456
GBL = XTL + 8192
HCNT = GBL + 256
UB = 1792
SC = 'sc1'

def WDL(dl):
    return [2 * SLOT, 2 * SLOT + 28672, 0, SLOT][dl]

def gemm_phases(k, opts=(), S2F=None, SWF=None, poll_all=None, signal=None):
    diag = k.diag
    O = dict(x if isinstance(x, tuple) else (x, True) for x in opts)
    SCI = SC if 'fused2' in opts else ''
    k(f'''
    s_bfe_u32 s17, s2, 0x20001
    s_lshl_b32 s17, s17, 2
    s_lshr_b32 s18, s2, 6
    s_add_u32 s17, s17, s18
    s_sub_u32 s18, s3, 4
    s_mul_i32 s19, s17, {16*14*1024}
    s_mul_i32 s20, s18, {7*1024}
    s_add_u32 s26, s4, s19
    s_addc_u32 s27, s5, 0''')
    k.srd(32, 26, 16 * 14 * 1024, WP)
    k(f'''s_cmp_lt_u32 s3, 4
    s_cbranch_scc1 L_g_common
    s_mov_b32 s61, 0x40000
    L_e2_poll:
    v_cmp_ne_u32 vcc, s60, v81
    s_cbranch_vccz L_e2_ok
    s_mov_b64 exec, vcc
    s_sleep {O.get('sle', 2)}
    global_load_dword v81, v80, s[4:5] {SC}
    s_waitcnt vmcnt(0)
    s_sub_u32 s61, s61, 1
    s_cbranch_scc0 L_e2_poll
    L_e2_ok:
    s_mov_b64 exec, -1''')
    k.mark('e2')
    def dmaA(st):
        sl = (st % 3) * SLOT
        k(f's_add_u32 m0, s20, {sl}\ns_add_u32 s23, s20, {st*BOFF}')
        for i in range(4): k(f'buffer_load_dwordx4 v12, s[32:35], s23 offen offset:{1024*i} {SCI} lds')
        k(f's_add_u32 m0, s20, {sl+4096}\ns_add_u32 s23, s20, {st*BOFF+4096}')
        for i in range(3): k(f'buffer_load_dwordx4 v12, s[32:35], s23 offen offset:{1024*i} {SCI} lds')
    dmaA(0)
    k(f'''L_g_common:
    s_and_b32 s16, s2, 1
    s_lshl_b32 s16, s16, 3
    s_bfe_u32 s21, s2, 0x30003
    s_add_u32 s16, s16, s21
    v_mul_u32_u24 v15, 12, v2
    s_and_b32 s50, s2, 7
    s_lshl_b32 s50, s50, 2
    s_bfe_u32 s51, s2, 0x20003
    s_add_u32 s50, s50, s51
    s_lshr_b32 s51, s2, 5
    s_lshr_b32 s56, s3, 2
    s_lshl_b32 s57, s51, 1
    s_add_u32 s58, s57, s56
    s_xor_b32 s56, s56, 1
    s_add_u32 s59, s57, s56
    s_mul_i32 s58, s58, {2*32*UB}
    s_mul_i32 s59, s59, {2*32*UB}
    s_mul_i32 s56, s3, {4*UB}
    s_add_u32 s52, s58, s56
    s_add_u32 s53, s52, {32*UB}
    s_add_u32 s54, s59, s56
    s_add_u32 s55, s54, {32*UB}''')
    k.srd(44, 4, 32 * 32 * UB, WD)
    k.srd(8, 4, 128 * 32 * UB, HH)
    WDR = 128
    def wd_loads(i):
        out = []
        u, kind = divmod(i, 2)
        off = UB * u + 1024 * kind
        for dl in range(4):
            r = WDR + 16 * i + 4 * dl
            pre = ''
            if off > 4095:
                pre = f's_add_u32 s56, s{52+dl}, 4096\n'; so = 's56'; o = off - 4096
            else:
                so = f's{52+dl}'; o = off
            if kind == 0: out.append(f'{pre}buffer_load_dwordx4 {v(r,4)}, v12, s[44:47], {so} offen offset:{o} {SCI}')
            else: out.append(f'{pre}buffer_load_dwordx3 {v(r,3)}, v15, s[44:47], {so} offen offset:{o} {SCI}')
        return out
    k(f's_cmp_ge_u32 s3, 4\ns_cbranch_scc1 L_g_loader')
    ACC = 128
    F = [16, 60]
    SA = 104; UN = 112
    AD = [5, 116, 121]
    def acc(blk, b): return ACC + 4 * (4 * blk + b)
    k(f'''
    s_and_b32 s18, s3, 1
    s_lshr_b32 s19, s3, 1
    s_mul_i32 s20, s18, {7*1024}
    v_add_u32 v5, s20, v12
    v_bfe_u32 v6, v2, 2, 2
    v_and_b32 v7, 1, v4
    v_lshl_or_b32 v7, v7, 2, v6
    s_lshl_b32 s21, s19, 2
    s_lshl_b32 s28, s18, 1
    s_add_u32 s21, s21, s28
    v_xor_b32 v7, s21, v7
    v_lshlrev_b32 v7, 5, v7
    v_lshl_add_u32 v6, v4, 3, v6
    v_lshl_add_u32 v6, v6, 8, v7
    v_and_b32 v7, 3, v2
    v_lshl_add_u32 v6, v7, 3, v6
    v_add_u32 v6, {BOFF}, v6
    v_xor_b32 v7, 32, v6
    v_xor_b32 v8, 64, v6
    v_xor_b32 v9, 96, v6''')
    for sl in (1, 2):
        for j in range(5): k(f'v_add_u32 v{AD[sl]+j}, {sl*SLOT}, v{5+j}')
    k(f'''; epilogue addresses: v10 stats read (local blocks 0,1), v13 (local blocks 2,3), v14 stats write, v11 constants
    s_lshl_b32 s29, s21, 7
    v_lshl_add_u32 v10, v3, 3, s29
    v_xor_b32 v13, 256, v10
    v_lshrrev_b32 v14, 5, v2
    v_lshl_add_u32 v14, v14, 7, v10
    v_add_u32 v10, {STATF}, v10
    v_add_u32 v13, {STATF}, v13
    v_add_u32 v14, {STATF}, v14
    s_mul_i32 s29, s18, {7*128}
    s_add_u32 s29, s29, {CONST}
    v_lshl_add_u32 v11, v4, 4, s29
    v_mov_b32 v1, 0xffff0000
    s_lshl_b32 s22, s17, 1
    s_add_u32 s22, s22, s18
    s_mul_i32 s22, s22, {UB}
    s_lshl_b32 s23, s16, 3''')
    for b in range(4):
        k(f's_xor_b32 s29, s21, {b}\ns_add_u32 s29, s29, s23\ns_mul_i32 s29, s29, {32*UB}\ns_add_u32 s{32+b}, s29, s22')
    for j in range(8): k(f'v_mov_b32 v{SA+j}, 0')
    def reads(n):
        fs = F[n % 2]; ks2 = n % 2; ad = AD[(n // 2) % 3]
        out = []
        for b in range(4):
            out.append(f'ds_read_b64_tr_b16 v[{fs+28+4*b}:{fs+29+4*b}], v{ad+1+b} offset:{8192*ks2}')
            out.append(f'ds_read_b64_tr_b16 v[{fs+30+4*b}:{fs+31+4*b}], v{ad+1+b} offset:{8192*ks2+1024}')
        for blk in range(7):
            out.insert(min(len(out), 2 + 3*blk), f'ds_read_b128 v[{fs+4*blk}:{fs+4*blk+3}], v{ad} offset:{(14*ks2+blk)*1024}')
        return out
    def stats(n):
        fs = F[n % 2]; out = []
        for b in range(2):
            for j in range(4):
                u = UN + 2 * (j % 2); src = fs + 28 + 4*b + j; a_ = SA + 4*b
                out += [f'v_lshlrev_b32 v{u}, 16, v{src}', f'v_and_b32 v{u+1}, v1, v{src}',
                        f'v_add_f32 v{a_}, v{a_}, v{u}', f'v_add_f32 v{a_+1}, v{a_+1}, v{u+1}',
                        f'v_fmac_f32 v{a_+2}, v{u}, v{u}', f'v_fmac_f32 v{a_+3}, v{u+1}, v{u+1}']
        return out
    final = f'''v_add_f32 v{SA}, v{SA}, v{SA+1}
    v_add_f32 v{SA+2}, v{SA+2}, v{SA+3}
    v_add_f32 v{SA+4}, v{SA+4}, v{SA+5}
    v_add_f32 v{SA+6}, v{SA+6}, v{SA+7}
    v_permlane32_swap_b32 v{SA}, v{SA+4}
    v_permlane32_swap_b32 v{SA+2}, v{SA+6}
    v_add_f32 v{SA}, v{SA}, v{SA+4}
    v_add_f32 v{SA+2}, v{SA+2}, v{SA+6}
    v_mov_b32 v{SA+1}, v{SA}
    v_mov_b32 v{SA+3}, v{SA+2}
    v_permlane16_swap_b32 v{SA}, v{SA+1}
    v_permlane16_swap_b32 v{SA+2}, v{SA+3}
    v_add_f32 v{SA}, v{SA}, v{SA+1}
    v_add_f32 v{SA+2}, v{SA+2}, v{SA+3}
    v_mul_f32 v{SA}, 0x3b000000, v{SA}
    v_mul_f32 v{SA+2}, 0x3b000000, v{SA+2}
    v_fma_f32 v{SA+2}, -v{SA}, v{SA}, v{SA+2}
    v_max_f32 v{SA+2}, 0, v{SA+2}
    v_cvt_pk_bf16_f32 v{SA+1}, v{SA+2}, -v{SA}
    v_and_b32 v{SA+4}, v1, v{SA+1}
    v_lshlrev_b32 v{SA+2}, 16, v{SA+1}
    v_add_f32 v{SA+2}, 0x3727c5ac, v{SA+2}
    v_cvt_pk_bf16_f32 v{SA+1}, v{SA+2}, v{SA+2}
    v_and_b32 v{SA+2}, v1, v{SA+1}
    v_sqrt_f32 v{SA+2}, v{SA+2}
    v_cvt_pk_bf16_f32 v{SA+1}, v{SA+2}, v{SA+2}
    v_and_b32 v{SA+2}, v1, v{SA+1}
    v_rcp_f32 v{SA+5}, v{SA+2}
    ds_write_b64 v14, v[{SA+4}:{SA+5}]'''.split('\n')
    k(f'v_mov_b32 v126, {HCNT}\nv_mov_b32 v127, 0\nds_write_b32 v126, v127')
    k('v_mov_b32 v126, s60\ns_cmp_lg_u32 s3, 0\ns_cbranch_scc1 L_g_s2done')
    if O.get('d2', 16): k(f"s_sleep {O.get('d2', 16)}")
    poll_all(k, 's2', S2F, FLG + 0x2000, 126, 127, 16, O.get('sl2', 3), O.get('m2', False))
    k(f'''s_cmp_lg_u32 s2, 0
    s_cbranch_scc1 L_g_s2done
    s_mov_b32 s29, {FLG}''')
    signal(k, 29, 126, 127)
    k('L_g_s2done:\ns_barrier')
    k.mark('s2')
    k('s_barrier')
    k.mark('bar0')
    for x in reads(0): k(x)
    for n in range(16):
        k('s_waitcnt lgkmcnt(0)')
        mem = []
        if n % 2 == 1 and n < 15:
            k.mark(f'pb{(n+1)//2}')
            k('s_barrier')
            k.mark(f'bar{(n+1)//2}')
        if n < 15: mem += reads(n + 1)
        va = stats(n) if 'nostats' not in O else []
        if n == 15: va += final
        fs = F[n % 2]
        total = len(mem) + len(va); done = 0
        for i in range(28):
            blk, b = divmod(i, 4)
            cin = '0' if n == 0 else v(acc(blk, b), 4)
            k(f'v_mfma_f32_16x16x32_bf16 {v(acc(blk,b),4)}, {v(fs+4*blk,4)}, {v(fs+28+4*b,4)}, {cin}')
            want = (total * (i + 1) + 27) // 28
            first = True
            while done < want:
                if mem and (first or not va): k(mem.pop(0))
                else: k(va.pop(0))
                first = False; done += 1
        assert not mem and not va
    k.mark('t1')
    k('s_waitcnt lgkmcnt(0)\ns_barrier')
    S = 16; R2 = 24; C = 32; T = 88; P = 116
    for b in range(4): k(f'ds_read_b64 v[{S+2*b}:{S+2*b+1}], v{10 if b < 2 else 13} offset:{128*(b%2)}')
    for blk in range(7):
        k(f'ds_read_b128 {v(C+8*blk,4)}, v11 offset:{128*blk}\nds_read_b128 {v(C+8*blk+4,4)}, v11 offset:{128*blk+64}')
    k(f's_mov_b32 s27, {NLOG2E}\ns_waitcnt lgkmcnt(14)')
    for b in range(4): k(f'v_mul_f32 v{R2+2*b}, s27, v{S+2*b+1}')
    for b in range(4):
        for grp in ((0, 1, 2, 3), (4, 5, 6)):
            if b == 0: k(f's_waitcnt lgkmcnt({6 if grp[0] == 0 else 0})')
            tt = {blk: T + 4 * n for n, blk in enumerate(grp)} if True else None
            for blk in grp:
                A_ = acc(blk, b); t = tt[blk]; c = C + 8*blk
                k(f'v_pk_fma_f32 {v(t,2)}, {v(S+2*b,2)}, {v(c,2)}, {v(A_,2)} op_sel_hi:[0,1,1]')
                k(f'v_pk_fma_f32 {v(t+2,2)}, {v(S+2*b,2)}, {v(c+2,2)}, {v(A_+2,2)} op_sel_hi:[0,1,1]')
            for blk in grp:
                t = tt[blk]; c = C + 8*blk
                k(f'v_pk_fma_f32 {v(t,2)}, {v(R2+2*b,2)}, {v(t,2)}, {v(c+4,2)} op_sel_hi:[0,1,1]')
                k(f'v_pk_fma_f32 {v(t+2,2)}, {v(S+2*b,2)}, {v(t+2,2)}, {v(c+6,2)} op_sel:[1,0,0] op_sel_hi:[1,1,1]')
            for blk in grp: k(f'v_exp_f32 v{tt[blk]}, v{tt[blk]}\nv_exp_f32 v{tt[blk]+1}, v{tt[blk]+1}')
            for blk in grp: k(f'v_pk_add_f32 {v(tt[blk],2)}, {v(tt[blk],2)}, 1.0 op_sel_hi:[1,0]')
            for blk in grp: k(f'v_rcp_f32 v{tt[blk]}, v{tt[blk]}\nv_rcp_f32 v{tt[blk]+1}, v{tt[blk]+1}')
            for blk in grp: k(f'v_pk_mul_f32 {v(tt[blk],2)}, {v(tt[blk],2)}, {v(tt[blk]+2,2)}')
            p = P + (0 if grp[0] == 0 else 4) if b % 2 == 0 else 104 + (0 if grp[0] == 0 else 4)
            for n, blk in enumerate(grp): k(f'v_cvt_pk_bf16_f32 v{p+n}, v{tt[blk]}, v{tt[blk]+1}')
            if grp[0] == 0: k(f'buffer_store_dwordx4 {v(p,4)}, v12, s[8:11], s{32+b} offen {SC}')
            else: k(f'buffer_store_dwordx3 {v(p,3)}, v15, s[8:11], s{32+b} offen offset:1024 {SC}')
    k.mark('epi')
    k(f'''s_lshl_b32 s21, s16, 11
    s_lshl_b32 s22, s17, 7
    s_add_u32 s21, s21, s22
    s_add_u32 s21, s21, {FLG + 0x18000}
    v_mov_b32 v5, {HCNT}
    v_mov_b32 v6, 1
    v_mov_b32 v8, s60
    s_waitcnt vmcnt(0)
    s_mov_b64 exec, 1
    ds_add_rtn_u32 v6, v5, v6
    s_mov_b64 exec, -1
    s_waitcnt lgkmcnt(0)
    v_readfirstlane_b32 s22, v6
    s_cmp_lg_u32 s22, 3
    s_cbranch_scc1 L_g_join''')
    signal(k, 21, 8, 5)
    k('s_branch L_g_join')

    CL = 64
    NB = O.get('nb', 4)
    k('L_g_loader:')
    dmaA(1)
    k(f'''v_lshlrev_b32 v6, 1, v4
    v_xor_b32 v6, v6, v3
    v_lshlrev_b32 v6, 4, v6
    v_lshl_add_u32 v7, v4, 12, v6
    v_xor_b32 v8, 128, v7
    s_lshl_b32 s21, s18, 16
    s_lshl_b32 s22, s16, 8
    s_add_u32 s21, s21, s22
    s_lshl_b32 s22, s18, 12
    s_add_u32 s22, s22, {BOFF}
    v_and_b32 v9, 31, v2''')
    k.srd(12, 4, 512 * 4096, X1T)
    k.srd(28, 4, 16 * 224 * 128, CSB)
    k(f'''v_min_u32 v9, 27, v9
    s_mul_i32 s25, s18, 28
    v_add_u32 v9, s25, v9
    v_lshlrev_b32 v10, 4, v9
    v_lshrrev_b32 v11, 5, v2
    v_mul_u32_u24 v11, {8*224*128}, v11
    v_add_u32 v11, v11, v10
    s_mul_i32 s25, s17, {14*128}''')
    def dmaB(st):
        sl = (st % 3) * SLOT
        for i in range(4):
            k(f's_add_u32 m0, s22, {sl+1024*i}\ns_add_u32 s24, s21, {st*64*4096 + 4*4096*i}')
            k(f'buffer_load_dwordx4 v{7 + i//2}, s[12:15], s24 offen {SCI} lds')
    def dma(st):
        dmaB(st); dmaA(st)
    dmaA(2)
    for i in range(NB):
        for x in wd_loads(i): k(x)
    k.mark('iss')
    k('s_barrier')
    k.mark('s2')
    def wd_dma(dl):
        for q in range(2):
            k(f's_add_u32 m0, s37, {WDL(dl) + 4096*q}\ns_add_u32 s23, s36, {dl*32*UB + 4096*q}')
            for i in range(4 - q): k(f'buffer_load_dwordx4 v12, s[44:47], s23 offen offset:{1024*i} {SCI} lds')
    k(f'''s_mul_i32 s36, s51, {4*32*UB}
    s_mul_i32 s37, s18, {4*UB}
    s_add_u32 s36, s36, s37''')
    dmaB(0); dmaB(1); dmaB(2)
    for st in range(8):
        k(f's_waitcnt vmcnt({[8, 4, 11, 19, 17, 11, 11, 7][st]})\ns_barrier')
        if st == 0: k.mark('bar0')
        if 1 <= st <= 5: dma(st + 2)
        if st == 2:
            for i in range(8):
                k(f'buffer_load_dwordx4 {v(CL+4*i,4)}, v11, s[28:31], s25 offen {SCI}\ns_add_u32 s25, s25, {224*128}')
        if st == 3:
            k.srd(40, 4, 4 * 3072 * 4 - 5 * 2048, MODP + 5 * 2048)
            k(f'''v_lshrrev_b32 v100, 3, v2
            v_and_b32 v101, 7, v2
            v_lshlrev_b32 v100, 12, v100
            v_lshl_add_u32 v100, v101, 4, v100
            s_lshl_b32 s38, s51, 18
            s_lshl_b32 s39, s18, 16
            s_add_u32 s38, s38, s39
            s_lshl_b32 s39, s50, 7
            s_add_u32 s38, s38, s39
            s_lshl_b32 s39, s18, 11
            s_add_u32 m0, s39, {XTL}
            v_lshlrev_b32 v101, 2, v2
            buffer_load_dwordx4 v100, s[12:15], s38 offen {SCI} lds
            s_add_u32 m0, s39, {XTL + 1024}
            s_add_u32 s38, s38, {8*4096}
            buffer_load_dwordx4 v100, s[12:15], s38 offen {SCI} lds
            s_lshl_b32 s38, s51, 8''')
            for q in range(4): k(f'buffer_load_dword v{102+q}, v101, s[40:43], s38 offen {SCI}\ns_add_u32 s38, s38, {3072*4}')
        if st == 5:
            k(f'''v_add_f32 v102, v102, v103
            v_add_f32 v104, v104, v105
            v_add_f32 v102, v102, v104
            v_cvt_pk_bf16_f32 v102, v102, v102
            v_and_b32 v102, v1, v102
            v_add_u32 v101, {GBL}, v101
            ds_write_b32 v101, v102''')
            for i in range(1, 8):
                for e in range(4): k(f'v_add_f32 v{CL+e}, v{CL+e}, v{CL+4*i+e}')
            for e in range(4): k(f'v_mov_b32 v{CL+4+e}, v{CL+e}')
            for e in range(4): k(f'v_permlane32_swap_b32 v{CL+e}, v{CL+4+e}')
            for e in range(4): k(f'v_add_f32 v{CL+e}, v{CL+e}, v{CL+4+e}')
            k(f'''v_and_b32 v{CL+4}, 4, v9
            v_cmp_eq_u32 vcc, 0, v{CL+4}
            v_mov_b32 v{CL+5}, {NLOG2E}
            v_cndmask_b32 v{CL+5}, v{CL+5}, 1.0, vcc
            v_mul_f32 v{CL}, v{CL}, v{CL+5}
            v_mul_f32 v{CL+1}, v{CL+1}, v{CL+5}
            v_add_u32 v10, {CONST}, v10
            ds_write_b128 v10, {v(CL,4)}
            s_waitcnt lgkmcnt(0)''')
        if st == 6: wd_dma(0)
        if st == 7: wd_dma(1); wd_dma(2)
    k('s_barrier')
    k.mark('t1')
    wd_dma(3)
    for i in range(NB, 8):
        for x in wd_loads(i): k(x)

    ACC2 = 16; RING = 80
    k('L_g_join:')
    k.mark('join')
    k(f'''s_mul_i32 s19, s50, {4*32*UB}
    s_mul_i32 s18, s3, {4*UB}
    s_add_u32 s19, s19, s18''')
    for tl in range(4):
        k(f's_add_u32 s21, s3, {tl}\ns_and_b32 s21, s21, 3\ns_mul_i32 s21, s21, {32*UB}\ns_add_u32 s{24+tl}, s19, s21')
    k(f'''s_lshr_b32 s21, s50, 1
    s_lshl_b32 s21, s21, 11
    s_lshl_b32 s22, s3, 8
    s_add_u32 s21, s21, s22
    s_add_u32 s21, s21, {FLG + 0x18000}
    v_and_b32 v7, 1, v2
    v_lshl_add_u32 v7, v7, 7, s21''')
    for i in (1, 3, 5, 7):
        for dl in range(4): k(f'v_mov_b32 v{WDR+16*i+4*dl+3}, 0')
    for j in range(12): k(f'v_mov_b32 v{RING+4*j+3}, 0')
    k(f'''s_cmp_lt_u32 s3, 4
    s_cbranch_scc1 L_g_x
    s_waitcnt vmcnt(0)
    L_g_x:
    s_barrier''')
    k.mark('pre3')
    k(f'''s_cmp_ge_u32 s3, 4
    s_cbranch_scc1 L_g_y
    s_mul_i32 s21, s3, {4*UB}
    v_add_u32 v10, s21, v12
    v_add_u32 v11, s21, v15
    v_add_u32 v13, {2*SLOT}, v10
    v_add_u32 v14, {2*SLOT}, v11''')
    for i in range(8):
        u, kind = divmod(i, 2)
        for dl in range(4):
            r = WDR + 16 * i + 4 * dl; o = WDL(dl) % (2 * SLOT) + u * UB + 1024 * kind
            a4, a3 = (13, 14) if dl < 2 else (10, 11)
            if kind == 0: k(f'ds_read_b128 {v(r,4)}, v{a4} offset:{o}')
            else: k(f'ds_read_b32 v{r}, v{a3} offset:{o}\nds_read_b32 v{r+1}, v{a3} offset:{o+4}\nds_read_b32 v{r+2}, v{a3} offset:{o+8}')
    k(f'''s_waitcnt lgkmcnt(0)
    L_g_y:
    s_barrier
    s_mov_b32 s61, 0x40000
    L_g_poll:
    global_load_dword v9, v7, s[4:5] {SC}
    s_waitcnt vmcnt(0)
    v_cmp_ne_u32 vcc, s60, v9
    s_cbranch_vccz L_g_go
    s_sleep 2
    s_sub_u32 s61, s61, 1
    s_cbranch_scc0 L_g_poll
    L_g_go:''')
    k.mark('s3')
    def hh_loads(i):
        u, kind = divmod(i, 2)
        r = RING + 16 * (i % 3)
        if i and kind == 0:
            for tl in range(4): k(f's_add_u32 s{24+tl}, s{24+tl}, {UB}')
        for tl in range(4):
            if kind == 0: k(f'buffer_load_dwordx4 {v(r+4*tl,4)}, v12, s[8:11], s{24+tl} offen {SC}')
            else: k(f'buffer_load_dwordx3 {v(r+4*tl,3)}, v15, s[8:11], s{24+tl} offen offset:1024 {SC}')
    for i in range(3): hh_loads(i)
    k.srd(40, 6, 2048 * 1024)
    k(f'''s_lshr_b32 s18, s3, 2
    s_and_b32 s19, s3, 3
    s_lshl_b32 s20, s51, 1
    s_add_u32 s20, s20, s18
    s_lshl_b32 s21, s50, 2
    s_add_u32 s21, s21, s19
    v_lshlrev_b32 v10, 10, v3
    v_lshl_add_u32 v10, v4, 4, v10
    s_lshl_b32 s28, s21, 14
    s_lshl_b32 s29, s20, 6
    s_add_u32 s28, s28, s29
    v_bfe_u32 v6, v2, 2, 2
    v_lshl_add_u32 v6, v4, 3, v6
    v_and_b32 v7, 3, v2
    v_lshlrev_b32 v7, 3, v7
    v_lshl_add_u32 v6, v6, 7, v7
    s_lshl_b32 s22, s18, 12
    s_lshl_b32 s23, s19, 5
    s_add_u32 s22, s22, s23
    s_add_u32 s22, s22, {XTL}
    v_add_u32 v6, s22, v6
    s_lshl_b32 s22, s18, 7
    s_add_u32 s22, s22, {GBL}
    v_lshl_add_u32 v7, v4, 5, s22''')
    XF = WDR; GB = WDR + 16
    for i in range(8):
        r = RING + 16 * (i % 3)
        younger = 4 * (min(8, i + 3) - i - 1)
        for tl in range(4):
            k(f's_waitcnt vmcnt({younger + 3 - tl})')
            for dl in range(4):
                a_ = ACC2 + 4 * (4 * dl + tl)
                cin = '0' if i == 0 else v(a_, 4)
                k(f'v_mfma_f32_16x16x32_bf16 {v(a_,4)}, {v(WDR+16*i+4*dl,4)}, {v(r+4*tl,4)}, {cin}')
        if i + 3 < 8: hh_loads(i + 3)
        if i == 1:
            k(f'''ds_read_b64_tr_b16 v[{XF+8}:{XF+9}], v6
            ds_read_b64_tr_b16 v[{XF+10}:{XF+11}], v6 offset:512
            ds_read_b128 {v(GB,4)}, v7
            ds_read_b128 {v(GB+4,4)}, v7 offset:16''')
        if i == 2:
            k('s_waitcnt lgkmcnt(0)')
            for j in range(4): k(f'v_lshlrev_b32 v{XF+2*j}, 16, v{XF+8+j}\nv_and_b32 v{XF+2*j+1}, v1, v{XF+8+j}')
    k.mark('g2')
    for pl in range(2):
        for tl in range(4):
            if pl == 0 and tl == 0: continue
            k(f'''s_add_u32 s29, s3, {tl}
            s_and_b32 s29, s29, 3
            s_xor_b32 s30, s18, {pl}
            s_lshl_b32 s30, s30, 2
            s_add_u32 s29, s29, s30
            s_mul_i32 s29, s29, 14336
            v_add_u32 v9, s29, v12''')
            for e in range(2):
                k(f'ds_write_b128 v9, {v(ACC2+4*(4*(2*pl+e)+tl),4)} offset:{(4*pl+tl-1)*2048 + 1024*e}')
    k(f's_mul_i32 s29, s3, 14336\nv_add_u32 v9, s29, v12\ns_waitcnt lgkmcnt(0)\ns_barrier')
    k.mark('red')
    RD = WDR + 48
    for i in range(14): k(f'ds_read_b128 {v(RD+4*i,4)}, v9 offset:{1024*i}')
    for i in range(14):
        k(f's_waitcnt lgkmcnt({13-i})')
        e = i % 2
        for q in range(4): k(f'v_add_f32 v{ACC2+16*e+q}, v{ACC2+16*e+q}, v{RD+4*i+q}')
    for e in range(2):
        for q in range(4):
            k(f'v_fma_f32 v{XF+4*e+q}, v{ACC2+16*e+q}, v{GB+4*e+q}, v{XF+4*e+q}')
    for j in range(4): k(f'v_cvt_pk_bf16_f32 v{RING+j}, v{XF+2*j}, v{XF+2*j+1}')
    k(f'buffer_store_dwordx4 {v(RING,4)}, v10, s[40:43], s28 offen')
```

```python
import re, os
_here = os.path.dirname(os.path.abspath(__file__))
HEADER = open(os.path.join(_here, '..', 'cdna_kernels', 'adaLN_cond__ssm_conv_s4__glu_gated_glu__prompt.s.ref')).read().split('; Override launch')[0]

def v(i, n=1): return f'v{i}' if n == 1 else f'v[{i}:{i+n-1}]'
def s(i, n=1): return f's{i}' if n == 1 else f's[{i}:{i+n-1}]'
def a(i, n=1): return f'a{i}' if n == 1 else f'a[{i}:{i+n-1}]'

_reg_re = re.compile(r'^(-?)(?:abs\()?\|?([vsa])(?:(\d+)|\[(\d+):(\d+)\])\|?\)?$')
def regs_of(tok):
    tok = tok.strip()
    if tok in ('vcc',): return {('s', 106), ('s', 107)}
    if tok == 'vcc_lo': return {('s', 106)}
    if tok == 'vcc_hi': return {('s', 107)}
    if tok == 'exec': return {('s', 126), ('s', 127)}
    if tok == 'm0': return {('s', 124)}
    m = _reg_re.match(tok)
    if not m: return set()
    k = m.group(2)
    if m.group(3) is not None: return {(k, int(m.group(3)))}
    return {(k, i) for i in range(int(m.group(4)), int(m.group(5)) + 1)}

TRANS = ('v_exp_f32', 'v_log_f32', 'v_rcp_f32', 'v_rsq_f32', 'v_sqrt_f32', 'v_sin_f32', 'v_cos_f32', 'v_rcp_iflag_f32')

class Ins:
    def __init__(self, line):
        self.line = line
        t = line.split(';')[0].strip()
        parts = t.split(None, 1)
        self.mn = parts[0]
        rest = parts[1] if len(parts) > 1 else ''
        ops = []; cur = ''; depth = 0
        for ch in rest:
            if ch == '[': depth += 1
            if ch == ']': depth -= 1
            if ch == ',' and depth == 0: ops.append(cur.strip()); cur = ''
            else: cur += ch
        if cur.strip(): ops.append(cur.strip())
        self.mods = ''
        if ops:
            sp = ops[-1].split(None, 1)
            if len(sp) > 1: ops[-1] = sp[0]; self.mods = sp[1]
        self.ops = ops
        mn = self.mn
        base = re.sub(r'_(e32|e64|sdwa|dpp)$', '', mn)
        self.base = base
        self.is_mfma = mn.startswith('v_mfma')
        self.is_valu = mn.startswith('v_') and not self.is_mfma
        self.is_ds = mn.startswith('ds_')
        self.is_vmem = mn.startswith(('buffer_', 'global_', 'flat_', 'scratch_'))
        self.is_salu = mn.startswith('s_')
        self.is_trans = base in TRANS
        self.is_dpp = mn.endswith('_dpp') or any(k in self.mods for k in ('row_shr', 'row_ror', 'row_shl', 'quad_perm', 'row_mirror', 'row_half_mirror', 'row_bcast', 'row_newbcast', 'wave_'))
        self.is_permlane = base.startswith('v_permlane')
        self.is_lane = base in ('v_readlane_b32', 'v_readfirstlane_b32', 'v_writelane_b32')
        self.opsel_moves = ('sdwa' in mn and 'dst_sel:DWORD' not in self.mods) or (('op_sel' in self.mods) and not base.startswith('v_pk_') and not self.is_mfma)
        W = set(); R = set()
        o = [regs_of(x) for x in ops]
        self.srcA = self.srcB = self.srcC = set()
        self.store_data = set()
        self.lds_dma = False
        if self.is_mfma:
            W = o[0]; self.srcA, self.srcB, self.srcC = o[1], o[2], o[3]; R = o[1] | o[2] | o[3]
            self.passes = 8 if '32x32' in mn else 4
            if '_f32_32x32x2_f32' in mn or '16x16x4_f32' in mn: raise Exception('sgemm hazards not modelled')
        elif self.is_valu:
            if self.is_permlane and 'swap' in base:
                W = o[0] | o[1]; R = o[0] | o[1]
            elif base.startswith('v_cmp'):
                W = o[0]; R = set().union(*o[1:])
                if base.startswith('v_cmpx'): W = W | regs_of('exec')
            elif base in ('v_add_co_u32', 'v_sub_co_u32', 'v_addc_co_u32', 'v_subb_co_u32', 'v_mad_u64_u32', 'v_div_scale_f32'):
                W = o[0] | o[1]; R = set().union(*o[2:])
            else:
                W = o[0]; R = set().union(*o[1:]) if len(o) > 1 else set()
                if base in ('v_fmac_f32', 'v_dot2c_f32_bf16', 'v_writelane_b32', 'v_pk_fmac_f16') or self.is_dpp or 'sdwa' in mn: R = R | o[0]
                if base == 'v_cndmask_b32' and len(ops) == 3: R = R | regs_of('vcc')
        elif self.is_ds:
            if base.startswith(('ds_read', 'ds_bpermute', 'ds_permute', 'ds_swizzle')) or '_rtn' in base:
                W = o[0]; R = set().union(*o[1:])
                if 'd16' in base: R = R | o[0]
            else:
                R = set().union(*o)
        elif self.is_vmem:
            lds = re.search(r'\blds\b', self.mods) is not None or '_load_lds_' in base
            self.lds_dma = lds
            if 'load' in base and not lds:
                W = o[0]; R = set().union(*o[1:])
                if 'd16' in base: R = R | o[0]
            elif lds:
                R = set().union(*o) | regs_of('m0')
            else:
                R = set().union(*o)
                if 'atomic' in base and 'sc0' in self.mods: W = o[0] if base.startswith('buffer') else o[0]
                if base.startswith('buffer_store'): self.store_data = o[0]
                elif base.startswith('global_store'): self.store_data = o[1]
                if not (base.endswith('x3') or base.endswith('x4')): self.store_data = set()
        elif self.is_salu:
            if base.startswith(('s_cmp', 's_cbranch', 's_branch', 's_waitcnt', 's_nop', 's_barrier', 's_endpgm', 's_setprio', 's_sleep', 's_bitcmp')):
                R = set().union(*o) if o else set()
            else:
                W = o[0] if o else set(); R = set().union(*o[1:]) if len(o) > 1 else set()
                if 'saveexec' in base: W = W | regs_of('exec')
        self.W = W; self.R = R
        self.states = 1
        if base == 's_nop': self.states = int(ops[0], 0) + 1

def need(p, c):
    n = 0
    vW = {r for r in p.W if r[0] != 's'}
    sW = {r for r in p.W if r[0] == 's'}
    if p.is_valu:
        if c.is_mfma and (vW & c.R): n = max(n, 2)
        if c.is_valu:
            if p.is_trans and not c.is_trans and (vW & c.R): n = max(n, 1)
            if p.is_trans and c.is_trans and (vW & c.R): n = max(n, 1)
            if c.is_dpp and (vW & c.R): n = max(n, 2)
            if c.is_permlane and (vW & c.R): n = max(n, 2)
            if c.is_lane and (vW & c.R): n = max(n, 1)
            if p.opsel_moves and (vW & (c.R | c.W)): n = max(n, 1)
            if sW & c.R: n = max(n, 4 if c.is_lane else 2)
            if (sW & regs_of('exec')):
                n = max(n, 5 if c.is_dpp else 4 if (c.is_lane or c.is_permlane) else 0)
        if c.is_mfma and (sW & regs_of('exec')): n = max(n, 4)
        if c.is_vmem and (sW & c.R): n = max(n, 5)
        if c.is_salu and (sW & c.R): n = max(n, 2)
        if p.is_trans and (c.is_vmem or c.is_ds) and (vW & c.R): n = max(n, 1)
        if p.base.startswith('v_dot2') and (vW & (c.R | c.W)):
            same = c.base == p.base and not (vW & set().union(*[regs_of(x) for x in c.ops[1:3]]))
            if not same: n = max(n, 3)
    if p.is_mfma:
        big = 12 if p.passes == 8 else 8
        if c.is_mfma:
            if p.W & (c.srcA | c.srcB): n = max(n, big)
            if p.W & c.srcC and not (p.W == c.srcC and p.passes == c.passes): n = max(n, 10 if p.passes == 8 else 6)
            if p.W & c.W and not (p.W & c.srcC): n = max(n, big)
        else:
            if p.W & (c.R | c.W): n = max(n, big)
            if c.is_valu and (p.srcC & c.W): n = max(n, 7 if p.passes == 8 else 3)
    if p.is_salu and (p.W & regs_of('m0')) and c.lds_dma: n = max(n, 1)
    if p.store_data and (p.store_data & c.W): n = max(n, 2)
    return n

def hazard_pass(lines):
    out = []
    hist = []
    for l in lines:
        t = l.strip()
        if not t or t.startswith(';') or t.startswith('.') or t.endswith(':'):
            out.append(l)
            continue
        c = Ins(t)
        req = 0
        dist = 0
        for p in reversed(hist):
            r = need(p, c) - dist
            if r > req: req = r
            dist += p.states
            if dist >= 12: break
        if req > 0:
            nop = Ins(f's_nop {req-1}')
            out.append(f'    s_nop {req-1}')
            hist.append(nop)
        out.append(l)
        hist.append(c)
        if len(hist) > 24: hist = hist[-24:]
        if c.base in ('s_branch', 's_endpgm'): hist = []
    return out

class Kernel:
    def __init__(self, name, grid, block, lds=0, vgpr=256, sgpr=102, accum=None):
        self.name = name; self.grid = grid; self.block = block; self.lds = lds
        self.vgpr = vgpr; self.sgpr = sgpr; self.accum = accum
        self.lines = []
        self.nlab = 0
    def __call__(self, s=''):
        for l in s.split('\n'):
            l = l.strip()
            if not l: continue
            if l.endswith(':') or l.startswith('.'):
                self.lines.append(l)
            else:
                self.lines.append('    ' + l)
    def label(self, base='L'):
        self.nlab += 1
        return f'L_{self.name}_{base}{self.nlab}'
    def srd(self, d, base, nbytes, off=0):
        if off:
            self(f's_add_u32 s{d}, s{base}, {off}\ns_addc_u32 s{d+1}, s{base+1}, 0')
        else:
            self(f's_mov_b32 s{d}, s{base}\ns_mov_b32 s{d+1}, s{base+1}')
        self(f's_mov_b32 s{d+2}, {nbytes}\ns_mov_b32 s{d+3}, 0x20000')
    diag = False
    def stamp(self, i):
        if self.diag and i == 0: self('s_memrealtime s[94:95]')
        ins = 's_memrealtime' if self.diag == 'rt' else 's_memtime'
        if self.diag: self(f's_waitcnt lgkmcnt(0)\n{ins} s[{70+2*i}:{71+2*i}]\ns_waitcnt lgkmcnt(0)')
    marks = ()
    def mark(self, name):
        if self.diag and name in self.marks: self.stamp(1 + self.marks.index(name))
    def dump_stamps(self, n, area, wave_sgpr=3, wpb=8):
        if not self.diag: return
        self('s_waitcnt vmcnt(0)')
        self.stamp(n - 1)
        self('s_memrealtime s[96:97]\ns_waitcnt lgkmcnt(0)')
        self(f's_load_dwordx2 s[64:65], s[0:1], 136\ns_mov_b64 exec, 1\ns_mul_i32 s68, s2, {wpb}\ns_add_u32 s68, s68, s{wave_sgpr}\ns_lshl_b32 s68, s68, 6\ns_waitcnt lgkmcnt(0)')
        self(f's_add_u32 s64, s64, {area}\ns_addc_u32 s65, s65, 0\ns_mov_b32 s66, 0x1000000\ns_mov_b32 s67, 0x20000\nv_mov_b32 v1, 0')
        for i in range(n):
            if i: self(f's_sub_u32 s{70+2*i}, s{70+2*i}, s70')
            self(f'v_mov_b32 v0, s{70+2*i}\nbuffer_store_dword v0, v1, s[64:67], s68 offen offset:{4*i}')
        self('v_mov_b32 v0, s94\nbuffer_store_dword v0, v1, s[64:67], s68 offen offset:48\nv_mov_b32 v0, s96\nbuffer_store_dword v0, v1, s[64:67], s68 offen offset:52')
        self('s_getreg_b32 s69, hwreg(HW_REG_HW_ID)\nv_mov_b32 v0, s69\nbuffer_store_dword v0, v1, s[64:67], s68 offen offset:60')
        self('s_getreg_b32 s69, hwreg(HW_REG_XCC_ID)\nv_mov_b32 v0, s69\nbuffer_store_dword v0, v1, s[64:67], s68 offen offset:56')
    def dump_debug(self, n):
        self('s_waitcnt vmcnt(0)')
        self.stamp(n - 1)
        self('s_load_dwordx2 s[64:65], s[0:1], 128\ns_mov_b64 exec, 1\nv_mov_b32 v1, 0\ns_not_b32 s70, s70\ns_waitcnt lgkmcnt(0)')
        for i in range(n):
            self(f'v_mov_b32 v0, s{70+2*i}\nglobal_atomic_umax v1, v0, s[64:65] offset:{4*i}')
    def text(self):
        o = [f'.globl {self.name}', '.p2align 8', f'.type {self.name},@function', f'{self.name}:']
        o += hazard_pass(self.lines)
        return '\n'.join(o)
    def desc(self):
        acc = self.accum if self.accum is not None else min(256, (self.vgpr + 3) // 4 * 4)
        return f'''.p2align 6
.amdhsa_kernel {self.name}
  .amdhsa_next_free_vgpr {self.vgpr}
  .amdhsa_next_free_sgpr {self.sgpr}
  .amdhsa_accum_offset {acc}
  .amdhsa_group_segment_fixed_size 0
  .amdhsa_kernarg_size 144
  .amdhsa_user_sgpr_count 2
  .amdhsa_user_sgpr_kernarg_segment_ptr 1
  .amdhsa_system_sgpr_workgroup_id_x 1
  .amdhsa_float_denorm_mode_32 3
  .amdhsa_float_denorm_mode_16_64 3
.end_amdhsa_kernel'''

def emit(kernels, order=None, path=None):
    order = order or kernels
    o = [HEADER.rstrip('\n')]
    single = len(order) == 1 and order[0].name.startswith('adaLN')
    for k in order:
        if single: o.append(f'; @launch grid=({k.grid},1,1) block=({k.block},1,1) lds={k.lds}')
        else: o.append(f'; @launch kernel={k.name} grid=({k.grid},1,1) block=({k.block},1,1) lds={k.lds}')
    o.append('.amdgcn_target "amdgcn-amd-amdhsa--gfx950"')
    o.append('.text')
    for k in kernels:
        o.append(k.text())
    o.append('.section .rodata,"a"')
    for k in kernels:
        o.append(k.desc())
    s_ = '\n'.join(o) + '\n'
    if path: open(path, 'w').write(s_)
    return s_
```
